```python
import torch

def _softmax(x, axis=-1):
    return torch.softmax(x, dim=axis)
def _gelu(x):
    return torch.nn.functional.gelu(x, approximate="tanh")
def _silu(x):
    return torch.nn.functional.silu(x)
def _sigmoid(x):
    return torch.sigmoid(x)
def _layernorm(x, axis=-1, eps=1e-5):
    m = x.mean(dim=axis, keepdim=True)
    v = x.var(dim=axis, keepdim=True, unbiased=False)
    return (x - m) / torch.sqrt(v + eps)
def _scatter_add(tgt, idx, src, axis=0):
    return tgt.clone().index_add_(axis, idx, src)
def _segment_sum(src, seg, n):
    out = torch.zeros((n,) + src.shape[1:], dtype=src.dtype)
    return out.index_add_(0, seg, src)
def _pad(x, pw):
    flat = tuple(v for pair in reversed(pw) for v in pair)
    return torch.nn.functional.pad(x, flat)

kernel_name = 'standalone__molecular_angular_gemnet__graph'

def setup_inputs():

    _w = (lambda a: (lambda t: t.to(torch.bfloat16) if t.is_floating_point() else t)(torch.as_tensor(a)))
    N, deg, De, L = 10000, 16, 4, 2
    E = N * deg
    T = E * deg
    NR = 8
    dist = torch.rand(E).to(float)
    angle = (torch.rand(T) * torch.pi).to(float)
    centers = torch.linspace(0.0, 1.0, NR).to(float)
    ang_freq = torch.arange(1, L + 1).to(float)
    return {
        "m": _w((lambda *s: torch.randn(*s, dtype=torch.bfloat16) * 0.05)(E, De)),
        "idx_in": _w((lambda lo, hi, *s: torch.randint(lo, hi, s))(0, E, T).to(torch.int64)),
        "idx_out": _w((lambda lo, hi, *s: torch.randint(lo, hi, s))(0, E, T).to(torch.int64)),
        "dist": _w(dist),
        "angle": _w(angle),
        "centers": _w(centers),
        "ang_freq": _w(ang_freq),
        "w_rbf": _w((lambda *s: torch.randn(*s, dtype=torch.bfloat16) * 0.4)(NR, De)),
        "w_sbf": _w((lambda *s: torch.randn(*s, dtype=torch.bfloat16) * 0.4)(NR * L, De)),
        "w_down": _w((lambda *s: torch.randn(*s, dtype=torch.bfloat16) * 0.4)(De, De)),
        "w_up": _w((lambda *s: torch.randn(*s, dtype=torch.bfloat16) * 0.4)(De, De)),
    }

def reference(m, idx_in, idx_out, dist, angle, centers, ang_freq, w_rbf, w_sbf, w_down, w_up):
    E, De = m.shape[0], m.shape[1]
    NR = centers.shape[0]
    L = ang_freq.shape[0]
    rbf = torch.exp(-10.0 * (dist[:, None] - centers[None, :]) ** 2)
    cbf = torch.cos(ang_freq[None, :] * angle[:, None])
    rbf_t = rbf[idx_out]
    sbf = torch.reshape(rbf_t[:, :, None] * cbf[:, None, :], (-1, NR * L))
    x = (m[idx_in] @ w_down) * (sbf @ w_sbf)
    agg = _segment_sum(x, idx_out, E)
    return m + (agg @ w_up) * (rbf @ w_rbf)
```

```python
class Asm:
    def __init__(self):
        self.lines = []
        self.tail = []
        self.vm = []
        self.lg = []
        self.uid = 0
    def __call__(self, s):
        for l in s.strip('\n').split('\n'):
            self.lines.append('    ' + l.strip() if not l.strip().endswith(':') else l.strip())
    def c(self, s):
        self.lines.append('    ; ' + s)
    def label(self, base):
        self.uid += 1
        return f'{base}_{self.uid}'
    def vmem(self, s, tag):
        self(s); self.vm.append(tag)
    def lds(self, s, tag=None):
        self(s); self.lg.append(tag)
    def _need(self, q, tags):
        idx = -1
        for t in tags:
            for i, x in enumerate(q):
                if x == t: idx = max(idx, i)
        return idx
    def wait(self, vm=(), lg=()):
        parts = []
        i = self._need(self.vm, vm)
        if i >= 0:
            n = len(self.vm) - 1 - i
            assert n <= 63
            parts.append(f'vmcnt({n})'); self.vm = self.vm[i+1:]
        i = self._need(self.lg, lg)
        if i >= 0:
            n = len(self.lg) - 1 - i
            if n > 15:
                n = 15
                self.lg = self.lg[len(self.lg)-15:]
            else:
                self.lg = self.lg[i+1:]
            parts.append(f'lgkmcnt({n})')
        if parts: self('s_waitcnt ' + ' '.join(parts))
    def wait_lg0(self):
        self('s_waitcnt lgkmcnt(0)'); self.lg = []
    def wait_vm0(self):
        self('s_waitcnt vmcnt(0)'); self.vm = []
    def text(self):
        import hazard
        o, n = hazard.fix(self.lines + self.tail)
        return '\n'.join(o) + '\n'
    def ool(self):
        a = self
        class C:
            def __enter__(s):
                s.save = (a.lines, a.vm, a.lg); a.lines = []; a.vm = []; a.lg = []
            def __exit__(s, *x):
                a.tail += a.lines; a.lines, a.vm, a.lg = s.save
        return C()
```

```python
import re
TRANS = ('v_exp_', 'v_log_', 'v_rcp_', 'v_rsq_', 'v_sqrt_', 'v_sin_', 'v_cos_')

def regs(tok):
    tok = tok.strip()
    tok = re.sub(r'^-|^\||\|$', '', tok)
    tok = tok.replace('neg(', '').replace('abs(', '').replace(')', '')
    m = re.fullmatch(r'([vs])(\d+)', tok)
    if m: return {m.group(1) + m.group(2)}
    m = re.fullmatch(r'([vs])\[(\d+):(\d+)\]', tok)
    if m: return {m.group(1) + str(i) for i in range(int(m.group(2)), int(m.group(3)) + 1)}
    if tok == 'vcc': return {'vcc_lo', 'vcc_hi'}
    if tok == 'exec': return {'exec_lo', 'exec_hi'}
    if tok in ('vcc_lo', 'vcc_hi', 'exec_lo', 'exec_hi', 'm0'): return {tok}
    return set()

def parse(line):
    s = line.split(';')[0].strip()
    if not s or s.endswith(':') or s.startswith('.'): return None
    p = s.split(None, 1)
    op = p[0]
    rest = p[1] if len(p) > 1 else ''
    ops = [o.strip() for o in rest.split(',')]
    last = ops[-1].split()
    mods = ' '.join(last[1:]) if last else ''
    if last: ops[-1] = last[0]
    return op, ops, mods

def info(line):
    r = parse(line)
    if r is None: return None
    op, ops, mods = r
    d = dict(op=op, valu=op.startswith('v_'), vmem=op.startswith(('buffer_', 'global_')),
             ds=op.startswith('ds_'), dst=set(), src=set(), dpp=('row_' in mods or 'quad_perm' in mods or 'wave_' in mods),
             trans=op.startswith(TRANS), sdwa=('_sdwa' in op or 'dst_sel' in mods), store=set(), nop=0)
    if op == 's_nop': d['nop'] = int(ops[0], 0) + 1
    if d['valu']:
        d['dst'] = regs(ops[0])
        srcs = ops[1:]
        if op.startswith(('v_add_co', 'v_sub_co', 'v_addc_co', 'v_subb_co')):
            d['dst'] |= regs(ops[1]); srcs = ops[2:]
        for o in srcs: d['src'] |= regs(o)
        if op.startswith('v_cmpx'): d['dst'] |= {'exec_lo', 'exec_hi'}
        if op.startswith(('v_fmac', 'v_mac', 'v_writelane', 'v_permlane', 'v_swap')): d['src'] |= regs(ops[0])
        if op.startswith('v_cndmask') and len(ops) == 3: d['src'] |= {'vcc_lo', 'vcc_hi'}
        d['lanesel'] = regs(ops[2]) if op.startswith(('v_readlane', 'v_writelane')) else set()
    elif d['vmem']:
        if 'store' in op:
            for o in ops: d['src'] |= regs(o)
            if 'x3' in op or 'x4' in op:
                d['store'] = regs(ops[0]) if op.startswith('buffer') else regs(ops[1])
        else:
            d['dst'] = regs(ops[0])
            for o in ops[1:]: d['src'] |= regs(o)
    elif d['ds']:
        if 'read' in op or 'rtn' in op or 'permute' in op:
            d['dst'] = regs(ops[0])
            for o in ops[1:]: d['src'] |= regs(o)
        else:
            for o in ops: d['src'] |= regs(o)
    return d

def need(p, c):
    n = 0
    if p['valu']:
        sd = {r for r in p['dst'] if not r.startswith('v') or r.startswith('vcc')}
        sd_noexec = {r for r in sd if not r.startswith('exec')}
        vd = p['dst'] - sd
        wexec = 'exec_lo' in p['dst'] or 'exec_hi' in p['dst']
        if c['vmem'] and sd_noexec & c['src']: n = max(n, 5)
        if c['valu']:
            if sd_noexec & c['src']: n = max(n, 2)
            if sd_noexec & c.get('lanesel', set()): n = max(n, 4)
            if c['dpp'] and vd & c['src']: n = max(n, 2)
            if c['dpp'] and wexec: n = max(n, 5)
            if wexec and c['op'].startswith(('v_readlane', 'v_readfirstlane', 'v_writelane', 'v_permlane')): n = max(n, 4)
            if wexec and ({'exec_lo', 'exec_hi'} & c['src']): n = max(n, 2)
            if c['op'].startswith(('v_readlane', 'v_readfirstlane')) and vd & c['src']: n = max(n, 1)
            if c['op'].startswith('v_permlane') and vd & c['src']: n = max(n, 2)
            if p['trans'] and vd & c['src']: n = max(n, 1)
            if p['sdwa'] and vd & (c['src'] | c['dst']): n = max(n, 1)
        if p['trans'] and (c['vmem'] or c['ds']) and vd & c['src']: n = max(n, 1)
    if p['store'] and p['store'] & c['dst']:
        n = max(n, 2)
    return n

def fix(lines):
    out = []; hist = []
    added = 0
    for l in lines:
        d = info(l)
        if d is None:
            out.append(l); continue
        dist = 0; pad = 0
        for p in reversed(hist):
            n = need(p, d)
            if n > dist: pad = max(pad, n - dist)
            dist += p['nop'] if p['nop'] else 1
            if dist >= 5: break
        if pad:
            out.append(f'    s_nop {pad-1}')
            hist.append(info(f's_nop {pad-1}')); added += 1
        out.append(l); hist.append(d)
        hist = hist[-8:]
    return out, added
```

```python
import sys, argparse
from asmlib import Asm

NAME = 'standalone__molecular_angular_gemnet__graph'
HDR = open('cdna_kernels/' + NAME + '.s.ref').read().split('; Override launch')[0]

STRIDE = 120064
OFFB = 256 * STRIDE
DIAGB = 64 << 20
WSZ = 0x10000000
CENTERS = [0x00000000, 0x3e120000, 0x3e920000, 0x3edb0000, 0x3f120000, 0x3f370000, 0x3f5b0000, 0x3f800000]

class Cfg:
    nB = 8; n1 = 8; cap = 16; diag = False; sched = 'a'; ldnt = ' nt'; stf = ' sc1'; wsoff = 0

def srd(a, r, size):
    a(f's_mov_b32 s{r+2}, {size}')
    a(f's_mov_b32 s{r+3}, 0x20000')

def stamp(a, cfg, k, vs):
    if not cfg.diag: return
    a('s_memrealtime s[100:101]')
    a.wait_lg0()
    a(f'v_writelane_b32 v{vs}, s100, {k}')

def stamp_out(a, cfg, kern, vs, vt, wsrd, swg):
    if not cfg.diag: return
    a('s_mov_b64 exec, 0xffff')
    a(f'v_lshrrev_b32 v{vt}, 6, v0')
    a(f'v_lshlrev_b32 v{vt}, 6, v{vt}')
    a(f'v_and_b32 v0, 63, v0')
    a(f'v_lshl_add_u32 v{vt}, v0, 2, v{vt}')
    a(f's_lshl_b32 s100, s{swg}, 10')
    a(f's_add_u32 s100, s100, {DIAGB + kern * 262144}')
    a(f'buffer_store_dword v{vs}, v{vt}, s[{wsrd}:{wsrd+3}], s100 offen')

def k1(cfg):
    a = Asm()
    OUT, IN, ANG, BIN, RK, BS, REC, VS = 4, 14, 24, 30, 40, 50, 60, 100
    CNT, BASE, RECB = 0, 1024, 2048
    a('s_cmp_ge_u32 s2, 256')
    a('s_cbranch_scc1 k1_end')
    a('s_load_dwordx2 s[16:17], s[0:1], 16')
    a('s_load_dwordx2 s[20:21], s[0:1], 8')
    a('s_load_dwordx2 s[24:25], s[0:1], 32')
    a('s_load_dwordx2 s[28:29], s[0:1], 0')
    a('s_load_dwordx2 s[32:33], s[0:1], 104')
    stamp(a, cfg, 0, VS)
    srd(a, 16, 10240000); srd(a, 20, 10240000); srd(a, 24, 5120000); srd(a, 28, 1280000); srd(a, 32, WSZ)
    a('v_lshlrev_b32 v1, 3, v0')
    a('v_lshlrev_b32 v2, 2, v0')
    a('s_mul_i32 s40, s2, 40000')
    for c in range(1, 5): a(f's_add_u32 s{40+c}, s40, {8000*c}')
    for c in range(5): a(f's_lshr_b32 s{45+c}, s{40+c}, 1')
    a('v_mov_b32 v3, 0')
    a('v_cmp_gt_u32 vcc, 256, v0')
    a('s_and_saveexec_b64 s[4:5], vcc')
    a.lds(f'ds_write_b32 v2, v3 offset:{CNT}')
    a('s_mov_b64 exec, s[4:5]')
    a('v_mov_b32 v3, 1')
    a('v_cmp_gt_u32 vcc, 1000, v0')
    a('s_and_b64 exec, exec, vcc')
    a('s_mov_b64 s[6:7], exec')
    a(f's_mul_i32 s50, s2, {STRIDE}')
    if cfg.wsoff: a(f's_add_u32 s50, s50, {cfg.wsoff}')
    for i in range(1, 8): a(f's_add_u32 s{50+i}, s50, {16000*i}')
    a('s_mov_b32 s8, 6871948')
    a('s_mov_b32 s9, -625')
    a('s_mov_b32 s10, 0x3ff')
    a(f's_mov_b32 s11, {RECB}')
    a('s_lshl_b32 s12, s2, 10')
    a(f's_add_u32 s12, s12, {OFFB + cfg.wsoff}')
    a.wait_lg0()
    if cfg.nB > 0:
        a(f's_cmp_lt_u32 s2, {16*cfg.nB}')
        a('s_cbranch_scc1 k1_B')

    def ld_out(c): a.vmem(f'buffer_load_dwordx2 v[{OUT+2*c}:{OUT+2*c+1}], v1, s[16:19], s{40+c} offen{cfg.ldnt}', f'o{c}')
    def ld_in(c): a.vmem(f'buffer_load_dwordx2 v[{IN+2*c}:{IN+2*c+1}], v1, s[20:23], s{40+c} offen{cfg.ldnt}', f'i{c}')
    def ld_ang(c): a.vmem(f'buffer_load_dword v{ANG+c}, v2, s[24:27], s{45+c} offen{cfg.ldnt}', f'a{c}')
    def rank(c):
        a.wait(vm=[f'o{c}'])
        for i in (2*c, 2*c+1):
            a(f'v_mul_hi_u32_u24 v{BIN+i}, s8, v{OUT+i}')
            a(f'v_mad_i32_i24 v{OUT+i}, v{BIN+i}, s9, v{OUT+i}')
            a(f'v_lshlrev_b32 v{BIN+i}, 2, v{BIN+i}')
            a.lds(f'ds_add_rtn_u32 v{RK+i}, v{BIN+i}, v3 offset:{CNT}', f'r{i}')
    def scan(RS, tag):
        a.wait_lg0()
        stamp(a, cfg, 1, VS)
        a('s_barrier')
        a('v_readfirstlane_b32 s3, v0')
        a('s_cmp_ge_u32 s3, 64')
        a(f's_cbranch_scc1 k1_noscan{tag}')
        T = 80
        a(f'v_lshlrev_b32 v{T+12}, 4, v0')
        a(f'ds_read_b128 v[{T}:{T+3}], v{T+12} offset:{CNT}')
        a('s_waitcnt lgkmcnt(0)')
        a(f'v_add_u32 v{T+5}, v{T}, v{T+1}')
        a(f'v_add_u32 v{T+6}, v{T+5}, v{T+2}')
        a(f'v_add_u32 v{T+7}, v{T+6}, v{T+3}')
        a(f'v_mov_b32 v{T+4}, v{T+7}')
        for d in ('row_shr:1 row_mask:0xf', 'row_shr:2 row_mask:0xf', 'row_shr:4 row_mask:0xf', 'row_shr:8 row_mask:0xf',
                  'row_bcast:15 row_mask:0xa', 'row_bcast:31 row_mask:0xc'):
            a(f'v_add_u32_dpp v{T+4}, v{T+4}, v{T+4} {d} bank_mask:0xf')
        a(f'v_sub_u32 v{T+4}, v{T+4}, v{T+7}')
        a(f'v_add_u32 v{T+7}, v{T+4}, v{T+6}')
        a(f'v_add_u32 v{T+6}, v{T+4}, v{T+5}')
        a(f'v_add_u32 v{T+5}, v{T+4}, v{T}')
        for i in range(4): a(f'v_mad_u32_u24 v{T+8+i}, v{T+4+i}, {RS}, s11')
        a(f'ds_write_b128 v{T+12}, v[{T+8}:{T+11}] offset:{BASE}')
        for i in range(4): a(f'v_lshl_or_b32 v{T+i}, v{T+i}, 16, v{T+4+i}')
        a(f'buffer_store_dwordx4 v[{T}:{T+3}], v{T+12}, s[32:35], s12 offen{cfg.stf}')
        a('s_waitcnt lgkmcnt(0)')
        a(f'k1_noscan{tag}:')
        a('s_barrier')
        for i in range(10): a.lds(f'ds_read_b32 v{BS+i}, v{BIN+i} offset:{BASE}', f'b{i}')
        for i in range(10):
            a.wait(lg=[f'b{i}'])
            a(f'v_mad_u32_u24 v{RK+i}, v{RK+i}, {RS}, v{BS+i}')
        stamp(a, cfg, 2, VS)
    def cosd1(c, dst):
        a.wait(vm=[f'a{c}'])
        a(f'v_lshlrev_b32 v{BS}, 16, v{ANG+c}')
        a(f'v_and_b32 v{BS+1}, 0xffff0000, v{ANG+c}')
        for h in range(2): a(f'v_mul_f32 v{BS+h}, 0.15915494, v{BS+h}')
        for h in range(2): a(f'v_fract_f32 v{BS+h}, v{BS+h}')
        for h in range(2): a(f'v_cos_f32 v{BS+h}, v{BS+h}')
        for h in range(2): a(f'v_bfi_b32 v{dst(2*c+h)}, s10, v{OUT+2*c+h}, v{BS+h}')
    def copyout(n16, tag):
        a.wait_lg0()
        stamp(a, cfg, 3, VS)
        a('s_barrier')
        a('v_lshlrev_b32 v1, 4, v0')
        a(f'v_add_u32 v2, 64000, v1')
        full, rem = divmod(n16, 1000)
        n = full + (1 if rem else 0)
        for i in range(n):
            b, o = (1, RECB + 16000*i) if i < 3 else (2, RECB + 16000*i - 64000)
            if o < 0: b, o = 1, RECB + 16000*i
            a.lds(f'ds_read_b128 v[{4+4*i}:{7+4*i}], v{b} offset:{o}', f'c{i}')
        for i in range(n):
            if i == full:
                a(f'v_cmp_gt_u32 vcc, {rem}, v0')
                a('s_and_b64 exec, exec, vcc')
                a(f's_cbranch_execz k1_skip{tag}')
            a.wait(lg=[f'c{i}'])
            a.vmem(f'buffer_store_dwordx4 v[{4+4*i}:{7+4*i}], v1, s[32:35], s{50+i} offen{cfg.stf}', f's{i}')
        a(f'k1_skip{tag}:')
        if cfg.diag:
            stamp(a, cfg, 4, VS)
            a.wait_vm0()
            stamp(a, cfg, 5, VS)
            stamp_out(a, cfg, 0, VS, 1, 32, 2)
        a('s_endpgm')
        a.vm = []; a.lg = []

    if cfg.nB < 16:
        for c in range(5): ld_out(c)
        for c in range(5): ld_in(c); ld_ang(c)
        a('s_barrier')
        for c in range(5): rank(c)
        scan(8, 'A')
        for c in range(5):
            cosd1(c, lambda i: REC + 2*i)
            for i in (2*c, 2*c+1):
                a(f'v_lshlrev_b32 v{REC+2*i+1}, 3, v{IN+i}')
                a.lds(f'ds_write_b64 v{RK+i}, v[{REC+2*i}:{REC+2*i+1}]')
        copyout(5000, 'A')
    if cfg.nB > 0:
        a('k1_B:')
        def gath(c):
            a.wait(vm=[f'i{c}'])
            for i in (2*c, 2*c+1):
                a(f'v_lshlrev_b32 v{IN+i}, 3, v{IN+i}')
                a.vmem(f'buffer_load_dwordx2 v[{REC+2*i}:{REC+2*i+1}], v{IN+i}, s[28:31], 0 offen', f'g{i}')
        for c in range(5): ld_in(c); ld_out(c)
        for c in range(5): ld_ang(c)
        a('s_barrier')
        if cfg.k1b == 0:
            for c in range(5): gath(c); rank(c)
            scan(12, 'B')
        else:
            gath(0); gath(1)
            for c in range(5): rank(c)
            scan(12, 'B')
            for c in range(2, 5): gath(c)
        for c in range(5):
            cosd1(c, lambda i: OUT + i)
            for i in (2*c, 2*c+1): a.lds(f'ds_write_b32 v{RK+i}, v{OUT+i} offset:8')
        for i in range(10):
            a.wait(vm=[f'g{i}'])
            a.lds(f'ds_write2_b32 v{RK+i}, v{REC+2*i}, v{REC+2*i+1} offset0:0 offset1:1')
        copyout(7500, 'B')
    a('k1_end:')
    a('s_endpgm')
    return a.text(), 104 if cfg.diag else 96, RECB + 120000

def k2(cfg):
    a = Asm()
    CAP = cfg.cap
    CNT = [0, 2560]; FB = 5120; C32 = 25120; M64 = C32 + CAP*2500
    LDS = M64 + CAP*5000
    assert M64 <= 65535 and LDS <= 163840
    R = lambda j: 8 + 4*j
    P, A_, G_, MO, DI = 72, 80, 88, 92, 94
    VSO, VCN, E4, E8, E8b, DF = 95, 96, 97, 98, 99, 100
    T = 102
    VS = 120
    isB = lambda j: j < cfg.nB
    rnd = lambda j: 0 if j < cfg.n1 else 1
    a('s_cmp_ge_u32 s2, 256')
    a('s_cbranch_scc1 k2_end')
    a('s_load_dwordx2 s[4:5], s[0:1], 104')
    a('s_load_dwordx2 s[8:9], s[0:1], 0')
    a('s_load_dwordx2 s[40:41], s[0:1], 24')
    a('s_load_dwordx4 s[36:39], s[0:1], 56')
    a('s_load_dwordx2 s[12:13], s[0:1], 88')
    a('s_load_dwordx4 s[16:19], s[0:1], 72')
    if cfg.diag: a('v_writelane_b32 v121, s2, 0')
    stamp(a, cfg, 0, VS)
    a('v_lshrrev_b32 v4, 6, v0')
    a('v_and_b32 v5, 63, v0')
    a('s_and_b32 s3, s2, 7')
    a('s_lshl_b32 s3, s3, 5')
    a('s_lshr_b32 s2, s2, 3')
    a('s_add_u32 s2, s2, s3')
    a('v_readfirstlane_b32 s3, v4')
    srd(a, 4, WSZ); srd(a, 8, 1280000); srd(a, 12, 1280000)
    a('v_lshlrev_b32 v6, 14, v5')
    a('s_lshl_b32 s42, s3, 8')
    a('s_add_u32 s42, s42, s2')
    a('s_lshl_b32 s42, s42, 2')
    a(f's_add_u32 s42, s42, {OFFB + cfg.wsoff}')
    a('s_mov_b64 exec, 0xffff')
    a.wait_lg0()
    a.vmem(f'buffer_load_dword v{VCN}, v6, s[4:7], s42 offen', 'off')
    a('s_mov_b64 exec, -1')
    a('v_lshlrev_b32 v1, 3, v5')
    a('v_mul_u32_u24 v2, 12, v5')
    a('v_mov_b32 v3, 2500')
    a('v_lshl_add_u32 v6, v5, 4, v4')
    a(f'v_mul_u32_u24 v6, {STRIDE}, v6')
    if cfg.wsoff: a(f'v_add_u32 v6, {cfg.wsoff}, v6')
    a(f'v_cmp_gt_u32 vcc, {cfg.nB}, v5')
    a('v_cndmask_b32 v7, 8, 12, vcc')
    a('s_mul_i32 s2, s2, 5000')
    a('s_cmp_ge_u32 s3, 10')
    a('s_cbranch_scc1 k2_N')
    save = (list(a.vm), list(a.lg))

    def fbadd(r):
        a(f'v_and_b32 v{T}, 0x3ff, v{r+2}')
        a(f'v_lshlrev_b32 v{T}, 5, v{T}')
        a(f'v_fma_f32 v{T+1}, v{r+2}, v{r+2}, -0.5')
        for k in range(4):
            if k & 1: a(f'v_and_b32 v{T+2}, 0xffff0000, v{r+k//2}')
            else: a(f'v_lshlrev_b32 v{T+2}, 16, v{r+k//2}')
            a(f'v_mul_f32 v{T+3}, v{r+2}, v{T+2}')
            a(f'ds_add_f32 v{T}, v{T+3} offset:{FB+4*k}')
            a(f'v_mul_f32 v{T+4}, v{T+1}, v{T+2}')
            a(f'ds_add_f32 v{T}, v{T+4} offset:{FB+16+4*k}')
    def ex(j): a(f's_bfm_b64 exec, s{20+j}, 0')
    def L(j):
        ex(j)
        if isB(j): a.vmem(f'buffer_load_dwordx3 v[{R(j)}:{R(j)+2}], v2, s[4:7], s{36+j} offen', f'L{j}')
        else: a.vmem(f'buffer_load_dwordx2 v[{R(j)+2}:{R(j)+3}], v1, s[4:7], s{36+j} offen', f'L{j}')
    def G(j):
        ex(j)
        a.wait(vm=[f'L{j}'])
        if not isB(j): a.vmem(f'buffer_load_dwordx2 v[{R(j)}:{R(j)+1}], v{R(j)+3}, s[8:11], 0 offen', f'G{j}')
        a(f'v_and_b32 v{T}, 0x3ff, v{R(j)+2}')
        a(f'v_lshlrev_b32 v{T}, 2, v{T}')
        a.lds(f'ds_add_rtn_u32 v{R(j)+3}, v{T}, v3 offset:{CNT[rnd(j)]}', f'r{j}')
    def W(j, cls):
        ex(j)
        a.wait(vm=[f'G{j}'], lg=[f'r{j}'])
        a(f'v_cmp_le_u32 vcc, {CAP*2500}, v{R(j)+3}')
        a(f'v_lshlrev_b32 v{T+6}, 1, v{R(j)+3}')
        a(f's_cbranch_vccnz k2_ov{cls}{j}')
        a(f'k2_ovr{cls}{j}:')
        a.lds(f'ds_write_b32 v{R(j)+3}, v{R(j)+2} offset:{C32}')
        a.lds(f'ds_write_b64 v{T+6}, v[{R(j)}:{R(j)+1}] offset:{M64}')
        with a.ool():
            a(f'k2_ov{cls}{j}:')
            a('s_and_saveexec_b64 s[0:1], vcc')
            fbadd(R(j))
            a('s_andn2_b64 exec, s[0:1], vcc')
            a(f's_branch k2_ovr{cls}{j}')
    def decode(cls, order):
        a.wait(vm=['off'])
        stamp(a, cfg, 1, VS)
        a('s_mov_b64 exec, 0xffff')
        a(f'v_and_b32 v{VSO}, 0xffff, v{VCN}')
        a(f'v_lshrrev_b32 v{VCN}, 16, v{VCN}')
        a(f'v_mad_u32_u24 v{VSO}, v{VSO}, v7, v6')
        a(f'v_min_u32 v{T}, 63, v{VCN}')
        a(f'v_cmp_lt_u32 vcc, 63, v{VCN}')
        D = 3
        for n in range(16 + D):
            if n < 16:
                j = order[n]
                a(f'v_readlane_b32 s{36+j}, v{VSO}, {j}')
                a(f'v_readlane_b32 s{20+j}, v{T}, {j}')
            if n >= D: L(order[n-D])
        a(f's_cbranch_vccnz k2_left{cls}')
        a(f'k2_leftr{cls}:')
        with a.ool():
            U = T + 8
            a(f'k2_left{cls}:')
            a('s_mov_b64 s[36:37], vcc')
            a(f'k2_lj{cls}:')
            a('s_ff1_i32_b64 s38, s[36:37]')
            a('s_bitset0_b64 s[36:37], s38')
            a(f'v_readlane_b32 s39, v{VSO}, s38')
            a(f'v_readlane_b32 s40, v{VCN}, s38')
            a(f'v_readlane_b32 s41, v7, s38')
            a('s_nop 4')
            a('s_mul_i32 s41, s41, 63')
            a('s_sub_u32 s40, s40, 63')
            a(f'k2_lc{cls}:')
            a('s_add_u32 s39, s39, s41')
            a('s_min_u32 s42, s40, 63')
            a('s_bfm_b64 exec, s42, 0')
            a(f's_cmp_lt_u32 s38, {cfg.nB}')
            a(f's_cbranch_scc1 k2_lb{cls}')
            a(f'buffer_load_dwordx2 v[{U+2}:{U+3}], v1, s[4:7], s39 offen')
            a('s_waitcnt vmcnt(0)')
            a(f'buffer_load_dwordx2 v[{U}:{U+1}], v{U+3}, s[8:11], 0 offen')
            a(f's_branch k2_ld{cls}')
            a(f'k2_lb{cls}:')
            a(f'buffer_load_dwordx3 v[{U}:{U+2}], v2, s[4:7], s39 offen')
            a(f'k2_ld{cls}:')
            a('s_waitcnt vmcnt(0)')
            fbadd(U)
            a('s_sub_u32 s40, s40, s42')
            a('s_cmp_lg_u32 s40, 0')
            a(f's_cbranch_scc1 k2_lc{cls}')
            a('s_cmp_lg_u64 s[36:37], 0')
            a(f's_cbranch_scc1 k2_lj{cls}')
            a(f's_branch k2_leftr{cls}')
    def bar():
        a.wait_lg0(); a('s_barrier')
    def exR(): a('s_mov_b64 exec, s[98:99]') if False else None
    def edge_exec():
        a('s_mov_b64 exec, -1')
        a('v_cmpx_gt_u32 vcc, 625, v0')
    def rnd2(x, y):
        a(f'v_cvt_pk_bf16_f32 v{y}, v{x}, v{y}')
        a(f'v_lshlrev_b32 v{x}, 16, v{y}')
        a(f'v_and_b32 v{y}, 0xffff0000, v{y}')
    bc = lambda h: f'op_sel:[{h},0,0] op_sel_hi:[{h},1,1]'
    bcm = lambda h: f'op_sel:[{h},0] op_sel_hi:[{h},1]'
    def unpack(dst, src):
        a(f's_lshl_b32 s{dst}, s{src}, 16')
        a(f's_and_b32 s{dst+1}, s{src}, 0xffff0000')
    def PRE(parts=None):
        edge_exec()
        a.wait(vm=['dist'])
        a.wait_lg0()
        a(f'v_lshlrev_b32 v{DI}, 16, v{DI}')
        tp = [0]
        for r0 in range(0, 8, 2):
            x, y = T + 8, T + 9
            for h, v in enumerate((x, y)): a(f'v_subrev_f32 v{v}, {hex(CENTERS[r0+h])}, v{DI}')
            rnd2(x, y)
            a(f'v_pk_mul_f32 v[{x}:{y}], v[{x}:{y}], v[{x}:{y}]')
            rnd2(x, y)
            for v in (x, y): a(f'v_mul_f32 v{v}, 0xc1200000, v{v}')
            rnd2(x, y)
            for v in (x, y): a(f'v_mul_f32 v{v}, 0x3fb8aa3b, v{v}')
            for v in (x, y): a(f'v_exp_f32 v{v}, v{v}')
            rnd2(x, y)
            for h in range(2):
                r = r0 + h
                for (dst, src) in [(A_, 52+4*r), (A_+2, 53+4*r), (A_+4, 54+4*r), (A_+6, 55+4*r), (G_, 84+2*r), (G_+2, 85+2*r)]:
                    s = 36 + 2*(tp[0] % 8); tp[0] += 1
                    unpack(s, src)
                    if r == 0: a(f'v_pk_mul_f32 v[{dst}:{dst+1}], v[{x}:{y}], s[{s}:{s+1}] {bcm(h)}')
                    else: a(f'v_pk_fma_f32 v[{dst}:{dst+1}], v[{x}:{y}], s[{s}:{s+1}], v[{dst}:{dst+1}] {bc(h)}')
        a('s_load_dwordx8 s[52:59], s[16:17], 0')
        a('s_load_dwordx8 s[60:67], s[18:19], 0')
        for d in (4, 6): a(f'v_pk_add_f32 v[{A_+d}:{A_+d+1}], v[{A_+d}:{A_+d+1}], v[{A_+d}:{A_+d+1}]')
        rnd2(G_, G_+1); rnd2(G_+2, G_+3)
    def RO(rd, bufs, inter=()):
        inter = list(inter)
        edge_exec()
        a.lds(f'ds_read_b32 v{DF}, v{E4} offset:{CNT[rd]}', 'cnt')
        nb = len(bufs)
        def rdslot(s):
            b = bufs[s % nb]
            a.lds(f'ds_read_b32 v{b+2}, v{E4} offset:{C32+2500*s}', f'c{s}')
            if s <= 13: a.lds(f'ds_read_b64 v[{b}:{b+1}], v{E8} offset:{5000*s}', f'm{s}')
            else: a.lds(f'ds_read_b64 v[{b}:{b+1}], v{E8b} offset:{5000*(s-14)}', f'm{s}')
        D = min(nb - 1, 6)
        for s in range(D): rdslot(s)
        a.wait(lg=['cnt'])
        a(f'v_sub_u32 v{DF}, v{DF}, v{E4}')
        for s in range(CAP):
            b = bufs[s % nb]
            a(f'v_cmpx_lt_u32 vcc, {2500*s}, v{DF}')
            if s >= CAP - 6: a(f's_cbranch_execz k2_rodone{rd}')
            if s + D < CAP: rdslot(s + D)
            a.wait(lg=[f'm{s}'])
            a(f'v_fma_f32 v{b+3}, v{b+2}, v{b+2}, -0.5')
            a(f'v_lshlrev_b32 v{T}, 16, v{b}')
            a(f'v_and_b32 v{T+1}, 0xffff0000, v{b}')
            a(f'v_lshlrev_b32 v{T+2}, 16, v{b+1}')
            a(f'v_and_b32 v{T+3}, 0xffff0000, v{b+1}')
            for l in range(2):
                for kk in range(2):
                    p = P + 4*l + 2*kk
                    a(f'v_pk_fma_f32 v[{p}:{p+1}], v[{b+2}:{b+3}], v[{T+2*kk}:{T+2*kk+1}], v[{p}:{p+1}] {bc(l)}')
        a(f'k2_rodone{rd}:')
        a.wait_lg0()
    def FIN():
        edge_exec()
        a(f'v_lshlrev_b32 v{E8}, 5, v0')
        a.lds(f'ds_read_b128 v[8:11], v{E8} offset:{FB}', 'f0')
        a.lds(f'ds_read_b128 v[12:15], v{E8} offset:{FB+16}', 'f1')
        for i in range(8): unpack(36 + 2*i, 52 + i)
        for i in range(8): unpack(68 + 2*i, 60 + i)
        a.wait_lg0()
        for i in range(4): a(f'v_pk_add_f32 v[{P+2*i}:{P+2*i+1}], v[{P+2*i}:{P+2*i+1}], v[{8+2*i}:{9+2*i}]')
        S = 16
        for k in range(4):
            for l in range(2):
                for dd in range(2):
                    src = P + 4*l + (k & 2); s = 36 + 4*k + 2*dd; d = S + 4*l + 2*dd
                    if k == 0: a(f'v_pk_mul_f32 v[{d}:{d+1}], v[{src}:{src+1}], s[{s}:{s+1}] {bcm(k&1)}')
                    else: a(f'v_pk_fma_f32 v[{d}:{d+1}], v[{src}:{src+1}], s[{s}:{s+1}], v[{d}:{d+1}] {bc(k&1)}')
        for dd in (0, 2): a(f'v_pk_mul_f32 v[{S+dd}:{S+dd+1}], v[{S+dd}:{S+dd+1}], v[{A_+dd}:{A_+dd+1}]')
        for dd in (0, 2): a(f'v_pk_fma_f32 v[{S+dd}:{S+dd+1}], v[{S+4+dd}:{S+5+dd}], v[{A_+4+dd}:{A_+5+dd}], v[{S+dd}:{S+dd+1}]')
        rnd2(S, S+1); rnd2(S+2, S+3)
        U = 24
        for k in range(4):
            for dd in range(2):
                src = S + (k & 2); s = 68 + 4*k + 2*dd; d = U + 2*dd
                if k == 0: a(f'v_pk_mul_f32 v[{d}:{d+1}], v[{src}:{src+1}], s[{s}:{s+1}] {bcm(k&1)}')
                else: a(f'v_pk_fma_f32 v[{d}:{d+1}], v[{src}:{src+1}], s[{s}:{s+1}], v[{d}:{d+1}] {bc(k&1)}')
        rnd2(U, U+1); rnd2(U+2, U+3)
        for dd in (0, 2): a(f'v_pk_mul_f32 v[{U+dd}:{U+dd+1}], v[{U+dd}:{U+dd+1}], v[{G_+dd}:{G_+dd+1}]')
        rnd2(U, U+1); rnd2(U+2, U+3)
        a.wait(vm=['mo'])
        a(f'v_lshlrev_b32 v{S}, 16, v{MO}')
        a(f'v_and_b32 v{S+1}, 0xffff0000, v{MO}')
        a(f'v_lshlrev_b32 v{S+2}, 16, v{MO+1}')
        a(f'v_and_b32 v{S+3}, 0xffff0000, v{MO+1}')
        for dd in (0, 2): a(f'v_pk_add_f32 v[{U+dd}:{U+dd+1}], v[{U+dd}:{U+dd+1}], v[{S+dd}:{S+dd+1}]')
        a(f'v_cvt_pk_bf16_f32 v{U}, v{U}, v{U+1}')
        a(f'v_cvt_pk_bf16_f32 v{U+1}, v{U+2}, v{U+3}')
        a(f'v_lshlrev_b32 v{E8}, 3, v0')
        a.vmem(f'buffer_store_dwordx2 v[{U}:{U+1}], v{E8}, s[12:15], s2 offen', 'st')

    r1 = [j for j in range(16) if rnd(j) == 0]; r2 = [j for j in range(16) if rnd(j) == 1]
    As = [j for j in range(16) if not isB(j)]; Bs = [j for j in range(16) if isB(j)]
    def body(cls):
        isR = cls == 'R'
        if isR:
            a('s_load_dwordx16 s[52:67], s[38:39], 0')
            a('s_load_dwordx16 s[68:83], s[38:39], 64')
            a('s_load_dwordx16 s[84:99], s[36:37], 0')
            a('v_cmpx_gt_u32 vcc, 625, v0')
            a(f'v_lshlrev_b32 v{E4}, 2, v0')
            a(f'v_lshlrev_b32 v{E8}, 3, v0')
            a('s_lshr_b32 s42, s2, 2')
            a(f'v_lshl_add_u32 v{T}, v0, 1, s42')
            a.vmem(f'global_load_ushort v{DI}, v{T}, s[40:41]', 'dist')
            a.vmem(f'buffer_load_dwordx2 v[{MO}:{MO+1}], v{E8}, s[8:11], s2 offen', 'mo')
            for i in range(8): a(f'v_mov_b32 v{P+i}, 0')
            a(f'ds_write_b32 v{E4}, v{E4} offset:{CNT[0]}')
            a(f'ds_write_b32 v{E4}, v{E4} offset:{CNT[1]}')
            a(f'v_lshlrev_b32 v{T}, 5, v0')
            a(f'ds_write_b128 v{T}, v[{P}:{P+3}] offset:{FB}')
            a(f'ds_write_b128 v{T}, v[{P}:{P+3}] offset:{FB+16}')
            a(f'v_add_u32 v{E8}, {M64}, v{E8}')
            a(f'v_add_u32 v{E8b}, 70000, v{E8}')
        bar()
        order = As + Bs
        decode(cls, order)
        stamp(a, cfg, 2, VS)
        A1 = [j for j in r1 if not isB(j)]; A2 = [j for j in r2 if not isB(j)]
        B1 = [j for j in r1 if isB(j)]; B2 = [j for j in r2 if isB(j)]
        ops = []
        if cfg.sched == 'a':
            ops += [('G', j) for j in A1]
            g2 = [('G', j) for j in A2]
            npre = cfg.gpre
            ops += g2[:npre]; g2 = g2[npre:]
            if isR and cfg.prepos == 0: ops.append(('PRE',))
            ops += [('G', j) for j in B1 + B2]
            w1 = [('W', j) for j in B1 + A1]
            keep = cfg.gpost
            mid = g2[:len(g2)-keep] if keep else g2
            post = g2[len(g2)-keep:] if keep else []
            n = 0
            for i, w in enumerate(w1):
                ops.append(w)
                while n < len(mid) and (n + 1) * len(w1) <= (i + 1) * len(mid): ops.append(mid[n]); n += 1
            ops += mid[n:]
            ops.append(('BAR',)); ops.append(('ST', 3))
            if not isR: ops += post
            if isR:
                ops.append(('RO', 0)); ops += post
            ops.append(('BAR',)); ops.append(('ST', 4))
            if isR and cfg.prepos == 1: ops.append(('PRE',))
            ops += [('W', j) for j in B2 + A2]
            ops.append(('BAR',)); ops.append(('ST', 5))
            if isR: ops += [('RO', 1), ('ST', 6), ('FIN',)]
        for o in ops:
            if o[0] == 'G': G(o[1])
            elif o[0] == 'W': W(o[1], cls)
            elif o[0] == 'PRE': PRE()
            elif o[0] == 'BAR': bar()
            elif o[0] == 'ST': stamp(a, cfg, o[1], VS)
            elif o[0] == 'RO': RO(o[1], [R(j) for j in (r1 if o[1] == 0 else range(8))][:8])
            elif o[0] == 'FIN': FIN()
        if cfg.diag:
            a.wait_vm0()
            stamp(a, cfg, 7, VS)
            a('v_readlane_b32 s2, v121, 0')
            stamp_out(a, cfg, 1, VS, 1, 4, 2)
        a('s_endpgm')
    body('R')
    a('k2_N:')
    a.vm, a.lg = save
    body('N')
    a('k2_end:')
    a('s_endpgm')
    return a.text(), 124 if cfg.diag else 120, LDS

def desc(name, vg):
    return f'''.amdhsa_kernel {name}
  .amdhsa_next_free_vgpr {vg}
  .amdhsa_next_free_sgpr 102
  .amdhsa_accum_offset {(vg+3)//4*4}
  .amdhsa_group_segment_fixed_size 0
  .amdhsa_kernarg_size 112
  .amdhsa_user_sgpr_count 2
  .amdhsa_user_sgpr_kernarg_segment_ptr 1
  .amdhsa_system_sgpr_workgroup_id_x 1
.end_amdhsa_kernel
'''

def build(cfg):
    t1, v1, l1 = k1(cfg); t2, v2, l2 = k2(cfg)
    n1, n2 = 'gemnet_bin_kernel', NAME + '_kernel'
    s = HDR
    s += f'; @launch kernel={n1} grid=(256,1,1) block=(1024,1,1) lds={l1}\n'
    s += f'; @launch kernel={n2} grid=(256,1,1) block=(1024,1,1) lds={l2}\n'
    s += '.amdgcn_target "amdgcn-amd-amdhsa--gfx950"\n.text\n'
    for n, t in ((n1, t1), (n2, t2)):
        s += f'.globl {n}\n.p2align 8\n.type {n},@function\n{n}:\n{t}'
    s += '.section .rodata,"a"\n'
    s += '.p2align 6\n' + desc(n1, v1) + '.p2align 6\n' + desc(n2, v2)
    return s

if __name__ == '__main__':
    ap = argparse.ArgumentParser()
    ap.add_argument('-o', default='cdna_kernels/' + NAME + '.s')
    ap.add_argument('kv', nargs='*')
    x = ap.parse_args()
    cfg = Cfg(); cfg.k1b = 0; cfg.gpre = 2; cfg.gpost = 0; cfg.prepos = 1
    for kv in x.kv:
        k, v = kv.split('=')
        try: v = int(v, 0)
        except ValueError: v = v.replace('_', ' ')
        setattr(cfg, k, v)
    open(x.o, 'w').write(build(cfg))
```

```python
import sys, argparse
from asmlib import Asm

NAME = 'standalone__molecular_angular_gemnet__graph'
HDR = open('cdna_kernels/' + NAME + '.s.ref').read().split('; Override launch')[0]

STRIDE = 120064
OFFB = 256 * STRIDE
DIAGB = 64 << 20
WSZ = 0x10000000
CENTERS = [0x00000000, 0x3e120000, 0x3e920000, 0x3edb0000, 0x3f120000, 0x3f370000, 0x3f5b0000, 0x3f800000]

class Cfg:
    nB = 8; n1 = 8; cap = 16; diag = False; sched = 'a'; ldnt = ' nt'; stf = ' sc1'; wsoff = 0

def srd(a, r, size):
    a(f's_mov_b32 s{r+2}, {size}')
    a(f's_mov_b32 s{r+3}, 0x20000')

def stamp(a, cfg, k, vs):
    if not cfg.diag: return
    a('s_memrealtime s[100:101]')
    a.wait_lg0()
    a(f'v_writelane_b32 v{vs}, s100, {k}')

def stamp_out(a, cfg, kern, vs, vt, wsrd, swg):
    if not cfg.diag: return
    a('s_mov_b64 exec, 0xffff')
    a(f'v_lshrrev_b32 v{vt}, 6, v0')
    a(f'v_lshlrev_b32 v{vt}, 6, v{vt}')
    a(f'v_and_b32 v0, 63, v0')
    a(f'v_lshl_add_u32 v{vt}, v0, 2, v{vt}')
    a(f's_lshl_b32 s100, s{swg}, 10')
    a(f's_add_u32 s100, s100, {DIAGB + kern * 262144}')
    a(f'buffer_store_dword v{vs}, v{vt}, s[{wsrd}:{wsrd+3}], s100 offen')

def k1(cfg):
    a = Asm()
    OUT, IN, ANG, BIN, RK, BS, REC, VS = 4, 14, 24, 30, 40, 50, 60, 100
    CNT, BASE, RECB = 0, 1024, 2048
    a('s_cmp_ge_u32 s2, 256')
    a('s_cbranch_scc1 k1_end')
    a('s_load_dwordx2 s[16:17], s[0:1], 16')
    a('s_load_dwordx2 s[20:21], s[0:1], 8')
    a('s_load_dwordx2 s[24:25], s[0:1], 32')
    a('s_load_dwordx2 s[28:29], s[0:1], 0')
    a('s_load_dwordx2 s[32:33], s[0:1], 104')
    stamp(a, cfg, 0, VS)
    srd(a, 16, 10240000); srd(a, 20, 10240000); srd(a, 24, 5120000); srd(a, 28, 1280000); srd(a, 32, WSZ)
    a('v_lshlrev_b32 v1, 3, v0')
    a('v_lshlrev_b32 v2, 2, v0')
    a('s_mul_i32 s40, s2, 40000')
    for c in range(1, 5): a(f's_add_u32 s{40+c}, s40, {8000*c}')
    for c in range(5): a(f's_lshr_b32 s{45+c}, s{40+c}, 1')
    a('v_mov_b32 v3, 0')
    a('v_cmp_gt_u32 vcc, 256, v0')
    a('s_and_saveexec_b64 s[4:5], vcc')
    a.lds(f'ds_write_b32 v2, v3 offset:{CNT}')
    a('s_mov_b64 exec, s[4:5]')
    a('v_mov_b32 v3, 1')
    a('v_cmp_gt_u32 vcc, 1000, v0')
    a('s_and_b64 exec, exec, vcc')
    a('s_mov_b64 s[6:7], exec')
    a(f's_mul_i32 s50, s2, {STRIDE}')
    if cfg.wsoff: a(f's_add_u32 s50, s50, {cfg.wsoff}')
    for i in range(1, 8): a(f's_add_u32 s{50+i}, s50, {16000*i}')
    a('s_mov_b32 s8, 6871948')
    a('s_mov_b32 s9, -625')
    a('s_mov_b32 s10, 0x3ff')
    a(f's_mov_b32 s11, {RECB}')
    a('s_lshl_b32 s12, s2, 10')
    a(f's_add_u32 s12, s12, {OFFB + cfg.wsoff}')
    a.wait_lg0()
    if cfg.nB > 0:
        a(f's_cmp_lt_u32 s2, {16*cfg.nB}')
        a('s_cbranch_scc1 k1_B')

    def ld_out(c): a.vmem(f'buffer_load_dwordx2 v[{OUT+2*c}:{OUT+2*c+1}], v1, s[16:19], s{40+c} offen{cfg.ldnt}', f'o{c}')
    def ld_in(c): a.vmem(f'buffer_load_dwordx2 v[{IN+2*c}:{IN+2*c+1}], v1, s[20:23], s{40+c} offen{cfg.ldnt}', f'i{c}')
    def ld_ang(c): a.vmem(f'buffer_load_dword v{ANG+c}, v2, s[24:27], s{45+c} offen{cfg.ldnt}', f'a{c}')
    def rank(c):
        a.wait(vm=[f'o{c}'])
        for i in (2*c, 2*c+1):
            a(f'v_mul_hi_u32_u24 v{BIN+i}, s8, v{OUT+i}')
            a(f'v_mad_i32_i24 v{OUT+i}, v{BIN+i}, s9, v{OUT+i}')
            a(f'v_lshlrev_b32 v{BIN+i}, 2, v{BIN+i}')
            a.lds(f'ds_add_rtn_u32 v{RK+i}, v{BIN+i}, v3 offset:{CNT}', f'r{i}')
    def scan(RS, tag):
        a.wait_lg0()
        stamp(a, cfg, 1, VS)
        a('s_barrier')
        a('v_readfirstlane_b32 s3, v0')
        a('s_cmp_ge_u32 s3, 64')
        a(f's_cbranch_scc1 k1_noscan{tag}')
        T = 80
        a(f'v_lshlrev_b32 v{T+12}, 4, v0')
        a(f'ds_read_b128 v[{T}:{T+3}], v{T+12} offset:{CNT}')
        a('s_waitcnt lgkmcnt(0)')
        a(f'v_add_u32 v{T+5}, v{T}, v{T+1}')
        a(f'v_add_u32 v{T+6}, v{T+5}, v{T+2}')
        a(f'v_add_u32 v{T+7}, v{T+6}, v{T+3}')
        a(f'v_mov_b32 v{T+4}, v{T+7}')
        for d in ('row_shr:1 row_mask:0xf', 'row_shr:2 row_mask:0xf', 'row_shr:4 row_mask:0xf', 'row_shr:8 row_mask:0xf',
                  'row_bcast:15 row_mask:0xa', 'row_bcast:31 row_mask:0xc'):
            a(f'v_add_u32_dpp v{T+4}, v{T+4}, v{T+4} {d} bank_mask:0xf')
        a(f'v_sub_u32 v{T+4}, v{T+4}, v{T+7}')
        a(f'v_add_u32 v{T+7}, v{T+4}, v{T+6}')
        a(f'v_add_u32 v{T+6}, v{T+4}, v{T+5}')
        a(f'v_add_u32 v{T+5}, v{T+4}, v{T}')
        for i in range(4): a(f'v_mad_u32_u24 v{T+8+i}, v{T+4+i}, {RS}, s11')
        a(f'ds_write_b128 v{T+12}, v[{T+8}:{T+11}] offset:{BASE}')
        for i in range(4): a(f'v_lshl_or_b32 v{T+i}, v{T+i}, 16, v{T+4+i}')
        a(f'buffer_store_dwordx4 v[{T}:{T+3}], v{T+12}, s[32:35], s12 offen{cfg.stf}')
        a('s_waitcnt lgkmcnt(0)')
        a(f'k1_noscan{tag}:')
        a('s_barrier')
        for i in range(10): a.lds(f'ds_read_b32 v{BS+i}, v{BIN+i} offset:{BASE}', f'b{i}')
        for i in range(10):
            a.wait(lg=[f'b{i}'])
            a(f'v_mad_u32_u24 v{RK+i}, v{RK+i}, {RS}, v{BS+i}')
        stamp(a, cfg, 2, VS)
    def cosd1(c, dst):
        a.wait(vm=[f'a{c}'])
        a(f'v_lshlrev_b32 v{BS}, 16, v{ANG+c}')
        a(f'v_and_b32 v{BS+1}, 0xffff0000, v{ANG+c}')
        for h in range(2): a(f'v_mul_f32 v{BS+h}, 0.15915494, v{BS+h}')
        for h in range(2): a(f'v_fract_f32 v{BS+h}, v{BS+h}')
        for h in range(2): a(f'v_cos_f32 v{BS+h}, v{BS+h}')
        for h in range(2): a(f'v_bfi_b32 v{dst(2*c+h)}, s10, v{OUT+2*c+h}, v{BS+h}')
    def copyout(n16, tag):
        a.wait_lg0()
        stamp(a, cfg, 3, VS)
        a('s_barrier')
        a('v_lshlrev_b32 v1, 4, v0')
        a(f'v_add_u32 v2, 64000, v1')
        full, rem = divmod(n16, 1000)
        n = full + (1 if rem else 0)
        for i in range(n):
            b, o = (1, RECB + 16000*i) if i < 3 else (2, RECB + 16000*i - 64000)
            if o < 0: b, o = 1, RECB + 16000*i
            a.lds(f'ds_read_b128 v[{4+4*i}:{7+4*i}], v{b} offset:{o}', f'c{i}')
        for i in range(n):
            if i == full:
                a(f'v_cmp_gt_u32 vcc, {rem}, v0')
                a('s_and_b64 exec, exec, vcc')
                a(f's_cbranch_execz k1_skip{tag}')
            a.wait(lg=[f'c{i}'])
            a.vmem(f'buffer_store_dwordx4 v[{4+4*i}:{7+4*i}], v1, s[32:35], s{50+i} offen{cfg.stf}', f's{i}')
        a(f'k1_skip{tag}:')
        if cfg.diag:
            stamp(a, cfg, 4, VS)
            a.wait_vm0()
            stamp(a, cfg, 5, VS)
            stamp_out(a, cfg, 0, VS, 1, 32, 2)
        a('s_endpgm')
        a.vm = []; a.lg = []

    if cfg.nB < 16:
        for c in range(5): ld_out(c)
        for c in range(5): ld_in(c); ld_ang(c)
        a('s_barrier')
        for c in range(5): rank(c)
        scan(8, 'A')
        for c in range(5):
            cosd1(c, lambda i: REC + 2*i)
            for i in (2*c, 2*c+1):
                a(f'v_lshlrev_b32 v{REC+2*i+1}, 3, v{IN+i}')
                a.lds(f'ds_write_b64 v{RK+i}, v[{REC+2*i}:{REC+2*i+1}]')
        copyout(5000, 'A')
    if cfg.nB > 0:
        a('k1_B:')
        def gath(c):
            a.wait(vm=[f'i{c}'])
            for i in (2*c, 2*c+1):
                a(f'v_lshlrev_b32 v{IN+i}, 3, v{IN+i}')
                a.vmem(f'buffer_load_dwordx2 v[{REC+2*i}:{REC+2*i+1}], v{IN+i}, s[28:31], 0 offen', f'g{i}')
        for c in range(5): ld_in(c); ld_out(c)
        for c in range(5): ld_ang(c)
        a('s_barrier')
        if cfg.k1b == 0:
            for c in range(5): gath(c); rank(c)
            scan(12, 'B')
        else:
            gath(0); gath(1)
            for c in range(5): rank(c)
            scan(12, 'B')
            for c in range(2, 5): gath(c)
        for c in range(5):
            cosd1(c, lambda i: OUT + i)
            for i in (2*c, 2*c+1): a.lds(f'ds_write_b32 v{RK+i}, v{OUT+i} offset:8')
        for i in range(10):
            a.wait(vm=[f'g{i}'])
            a.lds(f'ds_write2_b32 v{RK+i}, v{REC+2*i}, v{REC+2*i+1} offset0:0 offset1:1')
        copyout(7500, 'B')
    a('k1_end:')
    a('s_endpgm')
    return a.text(), 104 if cfg.diag else 96, RECB + 120000

def k2(cfg):
    a = Asm()
    CAP = cfg.cap
    CNT = [0, 2560]; FB = 5120; C32 = 25120; M64 = C32 + CAP*2500
    LDS = M64 + CAP*5000
    assert M64 <= 65535 and LDS <= 163840
    R = lambda j: 8 + 4*j
    P, A_, G_, MO, DI = 72, 80, 88, 92, 94
    VSO, VCN, E4, E8, E8b, DF = 95, 96, 97, 98, 99, 100
    T = 102
    VS = 120
    isB = lambda j: j < cfg.nB
    rnd = lambda j: 0 if j < cfg.n1 else 1
    a('s_cmp_ge_u32 s2, 256')
    a('s_cbranch_scc1 k2_end')
    a('s_load_dwordx2 s[4:5], s[0:1], 104')
    a('s_load_dwordx2 s[8:9], s[0:1], 0')
    a('s_load_dwordx2 s[40:41], s[0:1], 24')
    a('s_load_dwordx4 s[36:39], s[0:1], 56')
    a('s_load_dwordx2 s[12:13], s[0:1], 88')
    a('s_load_dwordx4 s[16:19], s[0:1], 72')
    if cfg.diag: a('v_writelane_b32 v121, s2, 0')
    stamp(a, cfg, 0, VS)
    a('v_lshrrev_b32 v4, 6, v0')
    a('v_and_b32 v5, 63, v0')
    a('s_and_b32 s3, s2, 7')
    a('s_lshl_b32 s3, s3, 5')
    a('s_lshr_b32 s2, s2, 3')
    a('s_add_u32 s2, s2, s3')
    a('v_readfirstlane_b32 s3, v4')
    srd(a, 4, WSZ); srd(a, 8, 1280000); srd(a, 12, 1280000)
    a('v_lshlrev_b32 v6, 14, v5')
    a('s_lshl_b32 s42, s3, 8')
    a('s_add_u32 s42, s42, s2')
    a('s_lshl_b32 s42, s42, 2')
    a(f's_add_u32 s42, s42, {OFFB + cfg.wsoff}')
    a('s_mov_b64 exec, 0xffff')
    a.wait_lg0()
    a.vmem(f'buffer_load_dword v{VCN}, v6, s[4:7], s42 offen', 'off')
    a('s_mov_b64 exec, -1')
    a('v_lshlrev_b32 v1, 3, v5')
    a('v_mul_u32_u24 v2, 12, v5')
    a('v_mov_b32 v3, 2500')
    a('v_lshl_add_u32 v6, v5, 4, v4')
    a(f'v_mul_u32_u24 v6, {STRIDE}, v6')
    if cfg.wsoff: a(f'v_add_u32 v6, {cfg.wsoff}, v6')
    a(f'v_cmp_gt_u32 vcc, {cfg.nB}, v5')
    a('v_cndmask_b32 v7, 8, 12, vcc')
    a('s_mul_i32 s2, s2, 5000')
    a('s_cmp_ge_u32 s3, 10')
    a('s_cbranch_scc1 k2_N')
    save = (list(a.vm), list(a.lg))

    def fbadd(r):
        a(f'v_and_b32 v{T}, 0x3ff, v{r+2}')
        a(f'v_lshlrev_b32 v{T}, 5, v{T}')
        a(f'v_fma_f32 v{T+1}, v{r+2}, v{r+2}, -0.5')
        for k in range(4):
            if k & 1: a(f'v_and_b32 v{T+2}, 0xffff0000, v{r+k//2}')
            else: a(f'v_lshlrev_b32 v{T+2}, 16, v{r+k//2}')
            a(f'v_mul_f32 v{T+3}, v{r+2}, v{T+2}')
            a(f'ds_add_f32 v{T}, v{T+3} offset:{FB+4*k}')
            a(f'v_mul_f32 v{T+4}, v{T+1}, v{T+2}')
            a(f'ds_add_f32 v{T}, v{T+4} offset:{FB+16+4*k}')
    def ex(j): a(f's_bfm_b64 exec, s{20+j}, 0')
    def L(j):
        ex(j)
        if isB(j): a.vmem(f'buffer_load_dwordx3 v[{R(j)}:{R(j)+2}], v2, s[4:7], s{36+j} offen', f'L{j}')
        else: a.vmem(f'buffer_load_dwordx2 v[{R(j)+2}:{R(j)+3}], v1, s[4:7], s{36+j} offen', f'L{j}')
    def G(j):
        ex(j)
        a.wait(vm=[f'L{j}'])
        if not isB(j): a.vmem(f'buffer_load_dwordx2 v[{R(j)}:{R(j)+1}], v{R(j)+3}, s[8:11], 0 offen', f'G{j}')
        a(f'v_and_b32 v{T}, 0x3ff, v{R(j)+2}')
        a(f'v_lshlrev_b32 v{T}, 2, v{T}')
        a.lds(f'ds_add_rtn_u32 v{R(j)+3}, v{T}, v3 offset:{CNT[rnd(j)]}', f'r{j}')
    def W(j, cls):
        ex(j)
        a.wait(vm=[f'G{j}'], lg=[f'r{j}'])
        a(f'v_cmp_le_u32 vcc, {CAP*2500}, v{R(j)+3}')
        a(f'v_lshlrev_b32 v{T+6}, 1, v{R(j)+3}')
        a(f's_cbranch_vccnz k2_ov{cls}{j}')
        a(f'k2_ovr{cls}{j}:')
        a.lds(f'ds_write_b32 v{R(j)+3}, v{R(j)+2} offset:{C32}')
        a.lds(f'ds_write_b64 v{T+6}, v[{R(j)}:{R(j)+1}] offset:{M64}')
        with a.ool():
            a(f'k2_ov{cls}{j}:')
            a('s_and_saveexec_b64 s[0:1], vcc')
            fbadd(R(j))
            a('s_andn2_b64 exec, s[0:1], vcc')
            a(f's_branch k2_ovr{cls}{j}')
    def decode(cls, order):
        a.wait(vm=['off'])
        stamp(a, cfg, 1, VS)
        a('s_mov_b64 exec, 0xffff')
        a(f'v_and_b32 v{VSO}, 0xffff, v{VCN}')
        a(f'v_lshrrev_b32 v{VCN}, 16, v{VCN}')
        a(f'v_mad_u32_u24 v{VSO}, v{VSO}, v7, v6')
        a(f'v_min_u32 v{T}, 63, v{VCN}')
        a(f'v_cmp_lt_u32 vcc, 63, v{VCN}')
        D = 3
        for n in range(16 + D):
            if n < 16:
                j = order[n]
                a(f'v_readlane_b32 s{36+j}, v{VSO}, {j}')
                a(f'v_readlane_b32 s{20+j}, v{T}, {j}')
            if n >= D: L(order[n-D])
        a(f's_cbranch_vccnz k2_left{cls}')
        a(f'k2_leftr{cls}:')
        with a.ool():
            U = T + 8
            a(f'k2_left{cls}:')
            a('s_mov_b64 s[36:37], vcc')
            a(f'k2_lj{cls}:')
            a('s_ff1_i32_b64 s38, s[36:37]')
            a('s_bitset0_b64 s[36:37], s38')
            a(f'v_readlane_b32 s39, v{VSO}, s38')
            a(f'v_readlane_b32 s40, v{VCN}, s38')
            a(f'v_readlane_b32 s41, v7, s38')
            a('s_nop 4')
            a('s_mul_i32 s41, s41, 63')
            a('s_sub_u32 s40, s40, 63')
            a(f'k2_lc{cls}:')
            a('s_add_u32 s39, s39, s41')
            a('s_min_u32 s42, s40, 63')
            a('s_bfm_b64 exec, s42, 0')
            a(f's_cmp_lt_u32 s38, {cfg.nB}')
            a(f's_cbranch_scc1 k2_lb{cls}')
            a(f'buffer_load_dwordx2 v[{U+2}:{U+3}], v1, s[4:7], s39 offen')
            a('s_waitcnt vmcnt(0)')
            a(f'buffer_load_dwordx2 v[{U}:{U+1}], v{U+3}, s[8:11], 0 offen')
            a(f's_branch k2_ld{cls}')
            a(f'k2_lb{cls}:')
            a(f'buffer_load_dwordx3 v[{U}:{U+2}], v2, s[4:7], s39 offen')
            a(f'k2_ld{cls}:')
            a('s_waitcnt vmcnt(0)')
            fbadd(U)
            a('s_sub_u32 s40, s40, s42')
            a('s_cmp_lg_u32 s40, 0')
            a(f's_cbranch_scc1 k2_lc{cls}')
            a('s_cmp_lg_u64 s[36:37], 0')
            a(f's_cbranch_scc1 k2_lj{cls}')
            a(f's_branch k2_leftr{cls}')
    def bar():
        a.wait_lg0(); a('s_barrier')
    def exR(): a('s_mov_b64 exec, s[98:99]') if False else None
    def edge_exec():
        a('s_mov_b64 exec, -1')
        a('v_cmpx_gt_u32 vcc, 625, v0')
    def rnd2(x, y):
        a(f'v_cvt_pk_bf16_f32 v{y}, v{x}, v{y}')
        a(f'v_lshlrev_b32 v{x}, 16, v{y}')
        a(f'v_and_b32 v{y}, 0xffff0000, v{y}')
    bc = lambda h: f'op_sel:[{h},0,0] op_sel_hi:[{h},1,1]'
    bcm = lambda h: f'op_sel:[{h},0] op_sel_hi:[{h},1]'
    def unpack(dst, src):
        a(f's_lshl_b32 s{dst}, s{src}, 16')
        a(f's_and_b32 s{dst+1}, s{src}, 0xffff0000')
    def PRE(parts=None):
        edge_exec()
        a.wait(vm=['dist'])
        a.wait_lg0()
        a(f'v_lshlrev_b32 v{DI}, 16, v{DI}')
        tp = [0]
        for r0 in range(0, 8, 2):
            x, y = T + 8, T + 9
            for h, v in enumerate((x, y)): a(f'v_subrev_f32 v{v}, {hex(CENTERS[r0+h])}, v{DI}')
            rnd2(x, y)
            a(f'v_pk_mul_f32 v[{x}:{y}], v[{x}:{y}], v[{x}:{y}]')
            rnd2(x, y)
            for v in (x, y): a(f'v_mul_f32 v{v}, 0xc1200000, v{v}')
            rnd2(x, y)
            for v in (x, y): a(f'v_mul_f32 v{v}, 0x3fb8aa3b, v{v}')
            for v in (x, y): a(f'v_exp_f32 v{v}, v{v}')
            rnd2(x, y)
            for h in range(2):
                r = r0 + h
                for (dst, src) in [(A_, 52+4*r), (A_+2, 53+4*r), (A_+4, 54+4*r), (A_+6, 55+4*r), (G_, 84+2*r), (G_+2, 85+2*r)]:
                    s = 36 + 2*(tp[0] % 8); tp[0] += 1
                    unpack(s, src)
                    if r == 0: a(f'v_pk_mul_f32 v[{dst}:{dst+1}], v[{x}:{y}], s[{s}:{s+1}] {bcm(h)}')
                    else: a(f'v_pk_fma_f32 v[{dst}:{dst+1}], v[{x}:{y}], s[{s}:{s+1}], v[{dst}:{dst+1}] {bc(h)}')
        a('s_load_dwordx8 s[52:59], s[16:17], 0')
        a('s_load_dwordx8 s[60:67], s[18:19], 0')
        for d in (4, 6): a(f'v_pk_add_f32 v[{A_+d}:{A_+d+1}], v[{A_+d}:{A_+d+1}], v[{A_+d}:{A_+d+1}]')
        rnd2(G_, G_+1); rnd2(G_+2, G_+3)
    def RO(rd, bufs, inter=()):
        inter = list(inter)
        edge_exec()
        a.lds(f'ds_read_b32 v{DF}, v{E4} offset:{CNT[rd]}', 'cnt')
        nb = len(bufs)
        def rdslot(s):
            b = bufs[s % nb]
            a.lds(f'ds_read_b32 v{b+2}, v{E4} offset:{C32+2500*s}', f'c{s}')
            if s <= 13: a.lds(f'ds_read_b64 v[{b}:{b+1}], v{E8} offset:{5000*s}', f'm{s}')
            else: a.lds(f'ds_read_b64 v[{b}:{b+1}], v{E8b} offset:{5000*(s-14)}', f'm{s}')
        D = min(nb - 1, 6)
        for s in range(D): rdslot(s)
        a.wait(lg=['cnt'])
        a(f'v_sub_u32 v{DF}, v{DF}, v{E4}')
        for s in range(CAP):
            b = bufs[s % nb]
            a(f'v_cmpx_lt_u32 vcc, {2500*s}, v{DF}')
            if s >= CAP - 6: a(f's_cbranch_execz k2_rodone{rd}')
            if s + D < CAP: rdslot(s + D)
            a.wait(lg=[f'm{s}'])
            a(f'v_fma_f32 v{b+3}, v{b+2}, v{b+2}, -0.5')
            a(f'v_lshlrev_b32 v{T}, 16, v{b}')
            a(f'v_and_b32 v{T+1}, 0xffff0000, v{b}')
            a(f'v_lshlrev_b32 v{T+2}, 16, v{b+1}')
            a(f'v_and_b32 v{T+3}, 0xffff0000, v{b+1}')
            for l in range(2):
                for kk in range(2):
                    p = P + 4*l + 2*kk
                    a(f'v_pk_fma_f32 v[{p}:{p+1}], v[{b+2}:{b+3}], v[{T+2*kk}:{T+2*kk+1}], v[{p}:{p+1}] {bc(l)}')
        a(f'k2_rodone{rd}:')
        a.wait_lg0()
    def FIN():
        edge_exec()
        a(f'v_lshlrev_b32 v{E8}, 5, v0')
        a.lds(f'ds_read_b128 v[8:11], v{E8} offset:{FB}', 'f0')
        a.lds(f'ds_read_b128 v[12:15], v{E8} offset:{FB+16}', 'f1')
        for i in range(8): unpack(36 + 2*i, 52 + i)
        for i in range(8): unpack(68 + 2*i, 60 + i)
        a.wait_lg0()
        for i in range(4): a(f'v_pk_add_f32 v[{P+2*i}:{P+2*i+1}], v[{P+2*i}:{P+2*i+1}], v[{8+2*i}:{9+2*i}]')
        S = 16
        for k in range(4):
            for l in range(2):
                for dd in range(2):
                    src = P + 4*l + (k & 2); s = 36 + 4*k + 2*dd; d = S + 4*l + 2*dd
                    if k == 0: a(f'v_pk_mul_f32 v[{d}:{d+1}], v[{src}:{src+1}], s[{s}:{s+1}] {bcm(k&1)}')
                    else: a(f'v_pk_fma_f32 v[{d}:{d+1}], v[{src}:{src+1}], s[{s}:{s+1}], v[{d}:{d+1}] {bc(k&1)}')
        for dd in (0, 2): a(f'v_pk_mul_f32 v[{S+dd}:{S+dd+1}], v[{S+dd}:{S+dd+1}], v[{A_+dd}:{A_+dd+1}]')
        for dd in (0, 2): a(f'v_pk_fma_f32 v[{S+dd}:{S+dd+1}], v[{S+4+dd}:{S+5+dd}], v[{A_+4+dd}:{A_+5+dd}], v[{S+dd}:{S+dd+1}]')
        rnd2(S, S+1); rnd2(S+2, S+3)
        U = 24
        for k in range(4):
            for dd in range(2):
                src = S + (k & 2); s = 68 + 4*k + 2*dd; d = U + 2*dd
                if k == 0: a(f'v_pk_mul_f32 v[{d}:{d+1}], v[{src}:{src+1}], s[{s}:{s+1}] {bcm(k&1)}')
                else: a(f'v_pk_fma_f32 v[{d}:{d+1}], v[{src}:{src+1}], s[{s}:{s+1}], v[{d}:{d+1}] {bc(k&1)}')
        rnd2(U, U+1); rnd2(U+2, U+3)
        for dd in (0, 2): a(f'v_pk_mul_f32 v[{U+dd}:{U+dd+1}], v[{U+dd}:{U+dd+1}], v[{G_+dd}:{G_+dd+1}]')
        rnd2(U, U+1); rnd2(U+2, U+3)
        a.wait(vm=['mo'])
        a(f'v_lshlrev_b32 v{S}, 16, v{MO}')
        a(f'v_and_b32 v{S+1}, 0xffff0000, v{MO}')
        a(f'v_lshlrev_b32 v{S+2}, 16, v{MO+1}')
        a(f'v_and_b32 v{S+3}, 0xffff0000, v{MO+1}')
        for dd in (0, 2): a(f'v_pk_add_f32 v[{U+dd}:{U+dd+1}], v[{U+dd}:{U+dd+1}], v[{S+dd}:{S+dd+1}]')
        a(f'v_cvt_pk_bf16_f32 v{U}, v{U}, v{U+1}')
        a(f'v_cvt_pk_bf16_f32 v{U+1}, v{U+2}, v{U+3}')
        a(f'v_lshlrev_b32 v{E8}, 3, v0')
        a.vmem(f'buffer_store_dwordx2 v[{U}:{U+1}], v{E8}, s[12:15], s2 offen', 'st')

    r1 = [j for j in range(16) if rnd(j) == 0]; r2 = [j for j in range(16) if rnd(j) == 1]
    As = [j for j in range(16) if not isB(j)]; Bs = [j for j in range(16) if isB(j)]
    def body(cls):
        isR = cls == 'R'
        if isR:
            a('s_load_dwordx16 s[52:67], s[38:39], 0')
            a('s_load_dwordx16 s[68:83], s[38:39], 64')
            a('s_load_dwordx16 s[84:99], s[36:37], 0')
            a('v_cmpx_gt_u32 vcc, 625, v0')
            a(f'v_lshlrev_b32 v{E4}, 2, v0')
            a(f'v_lshlrev_b32 v{E8}, 3, v0')
            a('s_lshr_b32 s42, s2, 2')
            a(f'v_lshl_add_u32 v{T}, v0, 1, s42')
            a.vmem(f'global_load_ushort v{DI}, v{T}, s[40:41]', 'dist')
            a.vmem(f'buffer_load_dwordx2 v[{MO}:{MO+1}], v{E8}, s[8:11], s2 offen', 'mo')
            for i in range(8): a(f'v_mov_b32 v{P+i}, 0')
            a(f'ds_write_b32 v{E4}, v{E4} offset:{CNT[0]}')
            a(f'ds_write_b32 v{E4}, v{E4} offset:{CNT[1]}')
            a(f'v_lshlrev_b32 v{T}, 5, v0')
            a(f'ds_write_b128 v{T}, v[{P}:{P+3}] offset:{FB}')
            a(f'ds_write_b128 v{T}, v[{P}:{P+3}] offset:{FB+16}')
            a(f'v_add_u32 v{E8}, {M64}, v{E8}')
            a(f'v_add_u32 v{E8b}, 70000, v{E8}')
        bar()
        order = As + Bs
        decode(cls, order)
        stamp(a, cfg, 2, VS)
        A1 = [j for j in r1 if not isB(j)]; A2 = [j for j in r2 if not isB(j)]
        B1 = [j for j in r1 if isB(j)]; B2 = [j for j in r2 if isB(j)]
        ops = []
        if cfg.sched == 'a':
            ops += [('G', j) for j in A1]
            g2 = [('G', j) for j in A2]
            npre = cfg.gpre
            ops += g2[:npre]; g2 = g2[npre:]
            if isR and cfg.prepos == 0: ops.append(('PRE',))
            ops += [('G', j) for j in B1 + B2]
            w1 = [('W', j) for j in B1 + A1]
            keep = cfg.gpost
            mid = g2[:len(g2)-keep] if keep else g2
            post = g2[len(g2)-keep:] if keep else []
            n = 0
            for i, w in enumerate(w1):
                ops.append(w)
                while n < len(mid) and (n + 1) * len(w1) <= (i + 1) * len(mid): ops.append(mid[n]); n += 1
            ops += mid[n:]
            ops.append(('BAR',)); ops.append(('ST', 3))
            if not isR: ops += post
            if isR:
                ops.append(('RO', 0)); ops += post
            ops.append(('BAR',)); ops.append(('ST', 4))
            if isR and cfg.prepos == 1: ops.append(('PRE',))
            ops += [('W', j) for j in B2 + A2]
            ops.append(('BAR',)); ops.append(('ST', 5))
            if isR: ops += [('RO', 1), ('ST', 6), ('FIN',)]
        for o in ops:
            if o[0] == 'G': G(o[1])
            elif o[0] == 'W': W(o[1], cls)
            elif o[0] == 'PRE': PRE()
            elif o[0] == 'BAR': bar()
            elif o[0] == 'ST': stamp(a, cfg, o[1], VS)
            elif o[0] == 'RO': RO(o[1], [R(j) for j in (r1 if o[1] == 0 else range(8))][:8])
            elif o[0] == 'FIN': FIN()
        if cfg.diag:
            a.wait_vm0()
            stamp(a, cfg, 7, VS)
            a('v_readlane_b32 s2, v121, 0')
            stamp_out(a, cfg, 1, VS, 1, 4, 2)
        a('s_endpgm')
    body('R')
    a('k2_N:')
    a.vm, a.lg = save
    body('N')
    a('k2_end:')
    a('s_endpgm')
    return a.text(), 124 if cfg.diag else 120, LDS

def desc(name, vg):
    return f'''.amdhsa_kernel {name}
  .amdhsa_next_free_vgpr {vg}
  .amdhsa_next_free_sgpr 102
  .amdhsa_accum_offset {(vg+3)//4*4}
  .amdhsa_group_segment_fixed_size 0
  .amdhsa_kernarg_size 112
  .amdhsa_user_sgpr_count 2
  .amdhsa_user_sgpr_kernarg_segment_ptr 1
  .amdhsa_system_sgpr_workgroup_id_x 1
.end_amdhsa_kernel
'''

def build(cfg):
    t1, v1, l1 = k1(cfg); t2, v2, l2 = k2(cfg)
    n1, n2 = 'gemnet_bin_kernel', NAME + '_kernel'
    s = HDR
    ks = [(n1, t1, v1, l1), (n2, t2, v2, l2)]
    em = '; @launch kernel=empty_kernel grid=(1,1,1) block=(64,1,1) lds=0\n'
    s += em * cfg.epre
    for r in range(cfg.rep):
        s += f'; @launch kernel={n1} grid=(256,1,1) block=(1024,1,1) lds={l1}\n'
        s += f'; @launch kernel={n2} grid=(256,1,1) block=(1024,1,1) lds={l2}\n' * cfg.rep2
    s += em * cfg.epost
    if cfg.epre or cfg.epost: ks.append(('empty_kernel', '    s_endpgm\n', 8, 0))
    s += '.amdgcn_target "amdgcn-amd-amdhsa--gfx950"\n.text\n'
    for n, t, v, l in ks:
        s += f'.globl {n}\n.p2align 8\n.type {n},@function\n{n}:\n{t}'
    s += '.section .rodata,"a"\n'
    for n, t, v, l in ks: s += '.p2align 6\n' + desc(n, v)
    return s

if __name__ == '__main__':
    ap = argparse.ArgumentParser()
    ap.add_argument('-o', default='cdna_kernels/' + NAME + '.s')
    ap.add_argument('kv', nargs='*')
    x = ap.parse_args()
    cfg = Cfg(); cfg.epre = 0; cfg.epost = 0; cfg.rep = 1; cfg.rep2 = 1; cfg.k1b = 0; cfg.gpre = 2; cfg.gpost = 0; cfg.prepos = 1
    for kv in x.kv:
        k, v = kv.split('=')
        try: v = int(v, 0)
        except ValueError: v = v.replace('_', ' ')
        setattr(cfg, k, v)
    open(x.o, 'w').write(build(cfg))
```

```python
import sys, argparse
from asmlib import Asm

NAME = 'standalone__molecular_angular_gemnet__graph'
HDR = open('cdna_kernels/' + NAME + '.s.ref').read().split('; Override launch')[0]

STRIDE = 120064
OFFB = 256 * STRIDE
DIAGB = 64 << 20
WSZ = 0x10000000
CENTERS = [0x00000000, 0x3e120000, 0x3e920000, 0x3edb0000, 0x3f120000, 0x3f370000, 0x3f5b0000, 0x3f800000]

class Cfg:
    nB = 8; n1 = 8; cap = 16; diag = False; sched = 'a'; ldnt = ' nt'; stf = ' sc1'; wsoff = 0

def srd(a, r, size):
    a(f's_mov_b32 s{r+2}, {size}')
    a(f's_mov_b32 s{r+3}, 0x20000')

def stamp(a, cfg, k, vs):
    if not cfg.diag: return
    a('s_memrealtime s[100:101]')
    a.wait_lg0()
    a(f'v_writelane_b32 v{vs}, s100, {k}')

def stamp_out(a, cfg, kern, vs, vt, wsrd, swg, dbg=0):
    if not cfg.diag: return
    if cfg.diag == 2:
        a(f'v_readlane_b32 s100, v{vs}, 0')
        a('s_not_b32 s100, s100')
        a(f'v_writelane_b32 v{vs}, s100, {6 if kern == 0 else 2}')
        a('s_mov_b64 exec, 0xff')
        a(f'v_and_b32 v0, 63, v0')
        a(f'v_lshlrev_b32 v0, 2, v0')
        a(f'global_atomic_umax v0, v{vs}, s[{dbg}:{dbg+1}] offset:{0 if kern == 0 else -512+32}')
        return
    a('s_mov_b64 exec, 0xffff')
    a(f'v_lshrrev_b32 v{vt}, 6, v0')
    a(f'v_lshlrev_b32 v{vt}, 6, v{vt}')
    a(f'v_and_b32 v0, 63, v0')
    a(f'v_lshl_add_u32 v{vt}, v0, 2, v{vt}')
    a(f's_lshl_b32 s100, s{swg}, 10')
    a(f's_add_u32 s100, s100, {DIAGB + kern * 262144}')
    a(f'buffer_store_dword v{vs}, v{vt}, s[{wsrd}:{wsrd+3}], s100 offen')

def k1(cfg):
    a = Asm()
    OUT, IN, ANG, BIN, RK, BS, REC, VS = 4, 14, 24, 30, 40, 50, 60, 100
    CNT, BASE, RECB = 0, 1024, 2048
    a('s_cmp_ge_u32 s2, 256')
    a('s_cbranch_scc1 k1_end')
    a('s_load_dwordx2 s[16:17], s[0:1], 16')
    a('s_load_dwordx2 s[20:21], s[0:1], 8')
    a('s_load_dwordx2 s[24:25], s[0:1], 32')
    a('s_load_dwordx2 s[28:29], s[0:1], 0')
    a('s_load_dwordx2 s[32:33], s[0:1], 104')
    if cfg.diag == 2:
        a('s_load_dwordx2 s[60:61], s[0:1], 96')
        a(f'v_mov_b32 v{VS}, 0')
    stamp(a, cfg, 0, VS)
    srd(a, 16, 10240000); srd(a, 20, 10240000); srd(a, 24, 5120000); srd(a, 28, 1280000); srd(a, 32, WSZ)
    a('v_lshlrev_b32 v1, 3, v0')
    a('v_lshlrev_b32 v2, 2, v0')
    a('s_mul_i32 s40, s2, 40000')
    for c in range(1, 5): a(f's_add_u32 s{40+c}, s40, {8000*c}')
    for c in range(5): a(f's_lshr_b32 s{45+c}, s{40+c}, 1')
    a('v_mov_b32 v3, 0')
    a('v_cmp_gt_u32 vcc, 256, v0')
    a('s_and_saveexec_b64 s[4:5], vcc')
    a.lds(f'ds_write_b32 v2, v3 offset:{CNT}')
    a('s_mov_b64 exec, s[4:5]')
    a('v_mov_b32 v3, 1')
    a('v_cmp_gt_u32 vcc, 1000, v0')
    a('s_and_b64 exec, exec, vcc')
    a('s_mov_b64 s[6:7], exec')
    a(f's_mul_i32 s50, s2, {STRIDE}')
    if cfg.wsoff: a(f's_add_u32 s50, s50, {cfg.wsoff}')
    for i in range(1, 8): a(f's_add_u32 s{50+i}, s50, {16000*i}')
    a('s_mov_b32 s8, 6871948')
    a('s_mov_b32 s9, -625')
    a('s_mov_b32 s10, 0x3ff')
    a(f's_mov_b32 s11, {RECB}')
    a('s_lshl_b32 s12, s2, 10')
    a(f's_add_u32 s12, s12, {OFFB + cfg.wsoff}')
    a.wait_lg0()
    if cfg.nB > 0:
        a(f's_cmp_lt_u32 s2, {16*cfg.nB}')
        a('s_cbranch_scc1 k1_B')

    def ld_out(c): a.vmem(f'buffer_load_dwordx2 v[{OUT+2*c}:{OUT+2*c+1}], v1, s[16:19], s{40+c} offen{cfg.ldnt}', f'o{c}')
    def ld_in(c): a.vmem(f'buffer_load_dwordx2 v[{IN+2*c}:{IN+2*c+1}], v1, s[20:23], s{40+c} offen{cfg.ldnt}', f'i{c}')
    def ld_ang(c): a.vmem(f'buffer_load_dword v{ANG+c}, v2, s[24:27], s{45+c} offen{cfg.ldnt}', f'a{c}')
    def rank(c):
        a.wait(vm=[f'o{c}'])
        for i in (2*c, 2*c+1):
            a(f'v_mul_hi_u32_u24 v{BIN+i}, s8, v{OUT+i}')
            a(f'v_mad_i32_i24 v{OUT+i}, v{BIN+i}, s9, v{OUT+i}')
            a(f'v_lshlrev_b32 v{BIN+i}, 2, v{BIN+i}')
            a.lds(f'ds_add_rtn_u32 v{RK+i}, v{BIN+i}, v3 offset:{CNT}', f'r{i}')
    def scan(RS, tag):
        a.wait_lg0()
        stamp(a, cfg, 1, VS)
        a('s_barrier')
        a('v_readfirstlane_b32 s3, v0')
        a('s_cmp_ge_u32 s3, 64')
        a(f's_cbranch_scc1 k1_noscan{tag}')
        T = 80
        a(f'v_lshlrev_b32 v{T+12}, 4, v0')
        a(f'ds_read_b128 v[{T}:{T+3}], v{T+12} offset:{CNT}')
        a('s_waitcnt lgkmcnt(0)')
        a(f'v_add_u32 v{T+5}, v{T}, v{T+1}')
        a(f'v_add_u32 v{T+6}, v{T+5}, v{T+2}')
        a(f'v_add_u32 v{T+7}, v{T+6}, v{T+3}')
        a(f'v_mov_b32 v{T+4}, v{T+7}')
        for d in ('row_shr:1 row_mask:0xf', 'row_shr:2 row_mask:0xf', 'row_shr:4 row_mask:0xf', 'row_shr:8 row_mask:0xf',
                  'row_bcast:15 row_mask:0xa', 'row_bcast:31 row_mask:0xc'):
            a(f'v_add_u32_dpp v{T+4}, v{T+4}, v{T+4} {d} bank_mask:0xf')
        a(f'v_sub_u32 v{T+4}, v{T+4}, v{T+7}')
        a(f'v_add_u32 v{T+7}, v{T+4}, v{T+6}')
        a(f'v_add_u32 v{T+6}, v{T+4}, v{T+5}')
        a(f'v_add_u32 v{T+5}, v{T+4}, v{T}')
        for i in range(4): a(f'v_mad_u32_u24 v{T+8+i}, v{T+4+i}, {RS}, s11')
        a(f'ds_write_b128 v{T+12}, v[{T+8}:{T+11}] offset:{BASE}')
        for i in range(4): a(f'v_lshl_or_b32 v{T+i}, v{T+i}, 16, v{T+4+i}')
        a(f'buffer_store_dwordx4 v[{T}:{T+3}], v{T+12}, s[32:35], s12 offen{cfg.stf}')
        a('s_waitcnt lgkmcnt(0)')
        a(f'k1_noscan{tag}:')
        a('s_barrier')
        for i in range(10): a.lds(f'ds_read_b32 v{BS+i}, v{BIN+i} offset:{BASE}', f'b{i}')
        for i in range(10):
            a.wait(lg=[f'b{i}'])
            a(f'v_mad_u32_u24 v{RK+i}, v{RK+i}, {RS}, v{BS+i}')
        stamp(a, cfg, 2, VS)
    def cosd1(c, dst):
        a.wait(vm=[f'a{c}'])
        a(f'v_lshlrev_b32 v{BS}, 16, v{ANG+c}')
        a(f'v_and_b32 v{BS+1}, 0xffff0000, v{ANG+c}')
        for h in range(2): a(f'v_mul_f32 v{BS+h}, 0.15915494, v{BS+h}')
        for h in range(2): a(f'v_fract_f32 v{BS+h}, v{BS+h}')
        for h in range(2): a(f'v_cos_f32 v{BS+h}, v{BS+h}')
        for h in range(2): a(f'v_bfi_b32 v{dst(2*c+h)}, s10, v{OUT+2*c+h}, v{BS+h}')
    def copyout(n16, tag):
        a.wait_lg0()
        stamp(a, cfg, 3, VS)
        a('s_barrier')
        a('v_lshlrev_b32 v1, 4, v0')
        a(f'v_add_u32 v2, 64000, v1')
        full, rem = divmod(n16, 1000)
        n = full + (1 if rem else 0)
        for i in range(n):
            b, o = (1, RECB + 16000*i) if i < 3 else (2, RECB + 16000*i - 64000)
            if o < 0: b, o = 1, RECB + 16000*i
            a.lds(f'ds_read_b128 v[{4+4*i}:{7+4*i}], v{b} offset:{o}', f'c{i}')
        for i in range(n):
            if i == full:
                a(f'v_cmp_gt_u32 vcc, {rem}, v0')
                a('s_and_b64 exec, exec, vcc')
                a(f's_cbranch_execz k1_skip{tag}')
            a.wait(lg=[f'c{i}'])
            a.vmem(f'buffer_store_dwordx4 v[{4+4*i}:{7+4*i}], v1, s[32:35], s{50+i} offen{cfg.stf}', f's{i}')
        a(f'k1_skip{tag}:')
        if cfg.diag:
            stamp(a, cfg, 4, VS)
            a.wait_vm0()
            stamp(a, cfg, 5, VS)
            stamp_out(a, cfg, 0, VS, 1, 32, 2, 60)
        a('s_endpgm')
        a.vm = []; a.lg = []

    if cfg.nB < 16:
        for c in range(5): ld_out(c)
        for c in range(5): ld_in(c); ld_ang(c)
        a('s_barrier')
        for c in range(5): rank(c)
        scan(8, 'A')
        for c in range(5):
            cosd1(c, lambda i: REC + 2*i)
            for i in (2*c, 2*c+1):
                a(f'v_lshlrev_b32 v{REC+2*i+1}, 3, v{IN+i}')
                a.lds(f'ds_write_b64 v{RK+i}, v[{REC+2*i}:{REC+2*i+1}]')
        copyout(5000, 'A')
    if cfg.nB > 0:
        a('k1_B:')
        def gath(c):
            a.wait(vm=[f'i{c}'])
            for i in (2*c, 2*c+1):
                a(f'v_lshlrev_b32 v{IN+i}, 3, v{IN+i}')
                a.vmem(f'buffer_load_dwordx2 v[{REC+2*i}:{REC+2*i+1}], v{IN+i}, s[28:31], 0 offen', f'g{i}')
        for c in range(5): ld_in(c); ld_out(c)
        for c in range(5): ld_ang(c)
        a('s_barrier')
        if cfg.k1b == 0:
            for c in range(5): gath(c); rank(c)
            scan(12, 'B')
        else:
            gath(0); gath(1)
            for c in range(5): rank(c)
            scan(12, 'B')
            for c in range(2, 5): gath(c)
        for c in range(5):
            cosd1(c, lambda i: OUT + i)
            for i in (2*c, 2*c+1): a.lds(f'ds_write_b32 v{RK+i}, v{OUT+i} offset:8')
        for i in range(10):
            a.wait(vm=[f'g{i}'])
            a.lds(f'ds_write2_b32 v{RK+i}, v{REC+2*i}, v{REC+2*i+1} offset0:0 offset1:1')
        copyout(7500, 'B')
    a('k1_end:')
    a('s_endpgm')
    return a.text(), 104 if cfg.diag else 96, RECB + 120000

def k2(cfg):
    a = Asm()
    CAP = cfg.cap
    CNT = [0, 2560]; FB = 5120; C32 = 25120; M64 = C32 + CAP*2500
    LDS = M64 + CAP*5000
    assert M64 <= 65535 and LDS <= 163840
    R = lambda j: 8 + 4*j
    P, A_, G_, MO, DI = 72, 80, 88, 92, 94
    VSO, VCN, E4, E8, E8b, DF = 95, 96, 97, 98, 99, 100
    T = 102
    VS = 120
    isB = lambda j: j < cfg.nB
    rnd = lambda j: 0 if j < cfg.n1 else 1
    a('s_cmp_ge_u32 s2, 256')
    a('s_cbranch_scc1 k2_end')
    a('s_load_dwordx2 s[4:5], s[0:1], 104')
    a('s_load_dwordx2 s[8:9], s[0:1], 0')
    a('s_load_dwordx2 s[40:41], s[0:1], 24')
    a('s_load_dwordx4 s[36:39], s[0:1], 56')
    a('s_load_dwordx2 s[12:13], s[0:1], 88')
    a('s_load_dwordx4 s[16:19], s[0:1], 72')
    if cfg.diag:
        a('v_writelane_b32 v121, s2, 0')
        a('v_writelane_b32 v121, s0, 1')
        a('v_writelane_b32 v121, s1, 2')
        a(f'v_mov_b32 v{VS}, 0')
    stamp(a, cfg, 0, VS)
    a('v_lshrrev_b32 v4, 6, v0')
    a('v_and_b32 v5, 63, v0')
    a('s_and_b32 s3, s2, 7')
    a('s_lshl_b32 s3, s3, 5')
    a('s_lshr_b32 s2, s2, 3')
    a('s_add_u32 s2, s2, s3')
    a('v_readfirstlane_b32 s3, v4')
    srd(a, 4, WSZ); srd(a, 8, 1280000); srd(a, 12, 1280000)
    a('v_lshlrev_b32 v6, 14, v5')
    a('s_lshl_b32 s42, s3, 8')
    a('s_add_u32 s42, s42, s2')
    a('s_lshl_b32 s42, s42, 2')
    a(f's_add_u32 s42, s42, {OFFB + cfg.wsoff}')
    a('s_mov_b64 exec, 0xffff')
    a.wait_lg0()
    a.vmem(f'buffer_load_dword v{VCN}, v6, s[4:7], s42 offen', 'off')
    a('s_mov_b64 exec, -1')
    a('v_lshlrev_b32 v1, 3, v5')
    a('v_mul_u32_u24 v2, 12, v5')
    a('v_mov_b32 v3, 2500')
    a('v_lshl_add_u32 v6, v5, 4, v4')
    a(f'v_mul_u32_u24 v6, {STRIDE}, v6')
    if cfg.wsoff: a(f'v_add_u32 v6, {cfg.wsoff}, v6')
    a(f'v_cmp_gt_u32 vcc, {cfg.nB}, v5')
    a('v_cndmask_b32 v7, 8, 12, vcc')
    a('s_mul_i32 s2, s2, 5000')
    a('s_cmp_ge_u32 s3, 10')
    a('s_cbranch_scc1 k2_N')
    save = (list(a.vm), list(a.lg))

    def fbadd(r):
        a(f'v_and_b32 v{T}, 0x3ff, v{r+2}')
        a(f'v_lshlrev_b32 v{T}, 5, v{T}')
        a(f'v_fma_f32 v{T+1}, v{r+2}, v{r+2}, -0.5')
        for k in range(4):
            if k & 1: a(f'v_and_b32 v{T+2}, 0xffff0000, v{r+k//2}')
            else: a(f'v_lshlrev_b32 v{T+2}, 16, v{r+k//2}')
            a(f'v_mul_f32 v{T+3}, v{r+2}, v{T+2}')
            a(f'ds_add_f32 v{T}, v{T+3} offset:{FB+4*k}')
            a(f'v_mul_f32 v{T+4}, v{T+1}, v{T+2}')
            a(f'ds_add_f32 v{T}, v{T+4} offset:{FB+16+4*k}')
    def ex(j): a(f's_bfm_b64 exec, s{20+j}, 0')
    def L(j):
        ex(j)
        if isB(j): a.vmem(f'buffer_load_dwordx3 v[{R(j)}:{R(j)+2}], v2, s[4:7], s{36+j} offen', f'L{j}')
        else: a.vmem(f'buffer_load_dwordx2 v[{R(j)+2}:{R(j)+3}], v1, s[4:7], s{36+j} offen', f'L{j}')
    def G(j):
        ex(j)
        a.wait(vm=[f'L{j}'])
        if not isB(j): a.vmem(f'buffer_load_dwordx2 v[{R(j)}:{R(j)+1}], v{R(j)+3}, s[8:11], 0 offen', f'G{j}')
        a(f'v_and_b32 v{T}, 0x3ff, v{R(j)+2}')
        a(f'v_lshlrev_b32 v{T}, 2, v{T}')
        a.lds(f'ds_add_rtn_u32 v{R(j)+3}, v{T}, v3 offset:{CNT[rnd(j)]}', f'r{j}')
    def W(j, cls):
        ex(j)
        a.wait(vm=[f'G{j}'], lg=[f'r{j}'])
        a(f'v_cmp_le_u32 vcc, {CAP*2500}, v{R(j)+3}')
        a(f'v_lshlrev_b32 v{T+6}, 1, v{R(j)+3}')
        a(f's_cbranch_vccnz k2_ov{cls}{j}')
        a(f'k2_ovr{cls}{j}:')
        a.lds(f'ds_write_b32 v{R(j)+3}, v{R(j)+2} offset:{C32}')
        a.lds(f'ds_write_b64 v{T+6}, v[{R(j)}:{R(j)+1}] offset:{M64}')
        with a.ool():
            a(f'k2_ov{cls}{j}:')
            a('s_and_saveexec_b64 s[0:1], vcc')
            fbadd(R(j))
            a('s_andn2_b64 exec, s[0:1], vcc')
            a(f's_branch k2_ovr{cls}{j}')
    def decode(cls, order):
        a.wait(vm=['off'])
        stamp(a, cfg, 1, VS)
        a('s_mov_b64 exec, 0xffff')
        a(f'v_and_b32 v{VSO}, 0xffff, v{VCN}')
        a(f'v_lshrrev_b32 v{VCN}, 16, v{VCN}')
        a(f'v_mad_u32_u24 v{VSO}, v{VSO}, v7, v6')
        a(f'v_min_u32 v{T}, 63, v{VCN}')
        a(f'v_cmp_lt_u32 vcc, 63, v{VCN}')
        D = 3
        for n in range(16 + D):
            if n < 16:
                j = order[n]
                a(f'v_readlane_b32 s{36+j}, v{VSO}, {j}')
                a(f'v_readlane_b32 s{20+j}, v{T}, {j}')
            if n >= D: L(order[n-D])
        a(f's_cbranch_vccnz k2_left{cls}')
        a(f'k2_leftr{cls}:')
        with a.ool():
            U = T + 8
            a(f'k2_left{cls}:')
            a('s_mov_b64 s[36:37], vcc')
            a(f'k2_lj{cls}:')
            a('s_ff1_i32_b64 s38, s[36:37]')
            a('s_bitset0_b64 s[36:37], s38')
            a(f'v_readlane_b32 s39, v{VSO}, s38')
            a(f'v_readlane_b32 s40, v{VCN}, s38')
            a(f'v_readlane_b32 s41, v7, s38')
            a('s_nop 4')
            a('s_mul_i32 s41, s41, 63')
            a('s_sub_u32 s40, s40, 63')
            a(f'k2_lc{cls}:')
            a('s_add_u32 s39, s39, s41')
            a('s_min_u32 s42, s40, 63')
            a('s_bfm_b64 exec, s42, 0')
            a(f's_cmp_lt_u32 s38, {cfg.nB}')
            a(f's_cbranch_scc1 k2_lb{cls}')
            a(f'buffer_load_dwordx2 v[{U+2}:{U+3}], v1, s[4:7], s39 offen')
            a('s_waitcnt vmcnt(0)')
            a(f'buffer_load_dwordx2 v[{U}:{U+1}], v{U+3}, s[8:11], 0 offen')
            a(f's_branch k2_ld{cls}')
            a(f'k2_lb{cls}:')
            a(f'buffer_load_dwordx3 v[{U}:{U+2}], v2, s[4:7], s39 offen')
            a(f'k2_ld{cls}:')
            a('s_waitcnt vmcnt(0)')
            fbadd(U)
            a('s_sub_u32 s40, s40, s42')
            a('s_cmp_lg_u32 s40, 0')
            a(f's_cbranch_scc1 k2_lc{cls}')
            a('s_cmp_lg_u64 s[36:37], 0')
            a(f's_cbranch_scc1 k2_lj{cls}')
            a(f's_branch k2_leftr{cls}')
    def bar():
        a.wait_lg0(); a('s_barrier')
    def exR(): a('s_mov_b64 exec, s[98:99]') if False else None
    def edge_exec():
        a('s_mov_b64 exec, -1')
        a('v_cmpx_gt_u32 vcc, 625, v0')
    def rnd2(x, y):
        a(f'v_cvt_pk_bf16_f32 v{y}, v{x}, v{y}')
        a(f'v_lshlrev_b32 v{x}, 16, v{y}')
        a(f'v_and_b32 v{y}, 0xffff0000, v{y}')
    bc = lambda h: f'op_sel:[{h},0,0] op_sel_hi:[{h},1,1]'
    bcm = lambda h: f'op_sel:[{h},0] op_sel_hi:[{h},1]'
    def unpack(dst, src):
        a(f's_lshl_b32 s{dst}, s{src}, 16')
        a(f's_and_b32 s{dst+1}, s{src}, 0xffff0000')
    def PRE(parts=None):
        edge_exec()
        a.wait(vm=['dist'])
        a.wait_lg0()
        a(f'v_lshlrev_b32 v{DI}, 16, v{DI}')
        tp = [0]
        for r0 in range(0, 8, 2):
            x, y = T + 8, T + 9
            for h, v in enumerate((x, y)): a(f'v_subrev_f32 v{v}, {hex(CENTERS[r0+h])}, v{DI}')
            rnd2(x, y)
            a(f'v_pk_mul_f32 v[{x}:{y}], v[{x}:{y}], v[{x}:{y}]')
            rnd2(x, y)
            for v in (x, y): a(f'v_mul_f32 v{v}, 0xc1200000, v{v}')
            rnd2(x, y)
            for v in (x, y): a(f'v_mul_f32 v{v}, 0x3fb8aa3b, v{v}')
            for v in (x, y): a(f'v_exp_f32 v{v}, v{v}')
            rnd2(x, y)
            for h in range(2):
                r = r0 + h
                for (dst, src) in [(A_, 52+4*r), (A_+2, 53+4*r), (A_+4, 54+4*r), (A_+6, 55+4*r), (G_, 84+2*r), (G_+2, 85+2*r)]:
                    s = 36 + 2*(tp[0] % 8); tp[0] += 1
                    unpack(s, src)
                    if r == 0: a(f'v_pk_mul_f32 v[{dst}:{dst+1}], v[{x}:{y}], s[{s}:{s+1}] {bcm(h)}')
                    else: a(f'v_pk_fma_f32 v[{dst}:{dst+1}], v[{x}:{y}], s[{s}:{s+1}], v[{dst}:{dst+1}] {bc(h)}')
        a('s_load_dwordx8 s[52:59], s[16:17], 0')
        a('s_load_dwordx8 s[60:67], s[18:19], 0')
        for d in (4, 6): a(f'v_pk_add_f32 v[{A_+d}:{A_+d+1}], v[{A_+d}:{A_+d+1}], v[{A_+d}:{A_+d+1}]')
        rnd2(G_, G_+1); rnd2(G_+2, G_+3)
    def RO(rd, bufs, inter=()):
        inter = list(inter)
        edge_exec()
        a.lds(f'ds_read_b32 v{DF}, v{E4} offset:{CNT[rd]}', 'cnt')
        nb = len(bufs)
        def rdslot(s):
            b = bufs[s % nb]
            a.lds(f'ds_read_b32 v{b+2}, v{E4} offset:{C32+2500*s}', f'c{s}')
            if s <= 13: a.lds(f'ds_read_b64 v[{b}:{b+1}], v{E8} offset:{5000*s}', f'm{s}')
            else: a.lds(f'ds_read_b64 v[{b}:{b+1}], v{E8b} offset:{5000*(s-14)}', f'm{s}')
        D = min(nb - 1, 6)
        for s in range(D): rdslot(s)
        a.wait(lg=['cnt'])
        a(f'v_sub_u32 v{DF}, v{DF}, v{E4}')
        for s in range(CAP):
            b = bufs[s % nb]
            a(f'v_cmpx_lt_u32 vcc, {2500*s}, v{DF}')
            if s >= CAP - 6: a(f's_cbranch_execz k2_rodone{rd}')
            if s + D < CAP: rdslot(s + D)
            a.wait(lg=[f'm{s}'])
            a(f'v_fma_f32 v{b+3}, v{b+2}, v{b+2}, -0.5')
            a(f'v_lshlrev_b32 v{T}, 16, v{b}')
            a(f'v_and_b32 v{T+1}, 0xffff0000, v{b}')
            a(f'v_lshlrev_b32 v{T+2}, 16, v{b+1}')
            a(f'v_and_b32 v{T+3}, 0xffff0000, v{b+1}')
            for l in range(2):
                for kk in range(2):
                    p = P + 4*l + 2*kk
                    a(f'v_pk_fma_f32 v[{p}:{p+1}], v[{b+2}:{b+3}], v[{T+2*kk}:{T+2*kk+1}], v[{p}:{p+1}] {bc(l)}')
        a(f'k2_rodone{rd}:')
        a.wait_lg0()
    def FIN():
        edge_exec()
        a(f'v_lshlrev_b32 v{E8}, 5, v0')
        a.lds(f'ds_read_b128 v[8:11], v{E8} offset:{FB}', 'f0')
        a.lds(f'ds_read_b128 v[12:15], v{E8} offset:{FB+16}', 'f1')
        for i in range(8): unpack(36 + 2*i, 52 + i)
        for i in range(8): unpack(68 + 2*i, 60 + i)
        a.wait_lg0()
        for i in range(4): a(f'v_pk_add_f32 v[{P+2*i}:{P+2*i+1}], v[{P+2*i}:{P+2*i+1}], v[{8+2*i}:{9+2*i}]')
        S = 16
        for k in range(4):
            for l in range(2):
                for dd in range(2):
                    src = P + 4*l + (k & 2); s = 36 + 4*k + 2*dd; d = S + 4*l + 2*dd
                    if k == 0: a(f'v_pk_mul_f32 v[{d}:{d+1}], v[{src}:{src+1}], s[{s}:{s+1}] {bcm(k&1)}')
                    else: a(f'v_pk_fma_f32 v[{d}:{d+1}], v[{src}:{src+1}], s[{s}:{s+1}], v[{d}:{d+1}] {bc(k&1)}')
        for dd in (0, 2): a(f'v_pk_mul_f32 v[{S+dd}:{S+dd+1}], v[{S+dd}:{S+dd+1}], v[{A_+dd}:{A_+dd+1}]')
        for dd in (0, 2): a(f'v_pk_fma_f32 v[{S+dd}:{S+dd+1}], v[{S+4+dd}:{S+5+dd}], v[{A_+4+dd}:{A_+5+dd}], v[{S+dd}:{S+dd+1}]')
        rnd2(S, S+1); rnd2(S+2, S+3)
        U = 24
        for k in range(4):
            for dd in range(2):
                src = S + (k & 2); s = 68 + 4*k + 2*dd; d = U + 2*dd
                if k == 0: a(f'v_pk_mul_f32 v[{d}:{d+1}], v[{src}:{src+1}], s[{s}:{s+1}] {bcm(k&1)}')
                else: a(f'v_pk_fma_f32 v[{d}:{d+1}], v[{src}:{src+1}], s[{s}:{s+1}], v[{d}:{d+1}] {bc(k&1)}')
        rnd2(U, U+1); rnd2(U+2, U+3)
        for dd in (0, 2): a(f'v_pk_mul_f32 v[{U+dd}:{U+dd+1}], v[{U+dd}:{U+dd+1}], v[{G_+dd}:{G_+dd+1}]')
        rnd2(U, U+1); rnd2(U+2, U+3)
        a.wait(vm=['mo'])
        a(f'v_lshlrev_b32 v{S}, 16, v{MO}')
        a(f'v_and_b32 v{S+1}, 0xffff0000, v{MO}')
        a(f'v_lshlrev_b32 v{S+2}, 16, v{MO+1}')
        a(f'v_and_b32 v{S+3}, 0xffff0000, v{MO+1}')
        for dd in (0, 2): a(f'v_pk_add_f32 v[{U+dd}:{U+dd+1}], v[{U+dd}:{U+dd+1}], v[{S+dd}:{S+dd+1}]')
        a(f'v_cvt_pk_bf16_f32 v{U}, v{U}, v{U+1}')
        a(f'v_cvt_pk_bf16_f32 v{U+1}, v{U+2}, v{U+3}')
        a(f'v_lshlrev_b32 v{E8}, 3, v0')
        a.vmem(f'buffer_store_dwordx2 v[{U}:{U+1}], v{E8}, s[12:15], s2 offen', 'st')

    r1 = [j for j in range(16) if rnd(j) == 0]; r2 = [j for j in range(16) if rnd(j) == 1]
    As = [j for j in range(16) if not isB(j)]; Bs = [j for j in range(16) if isB(j)]
    def body(cls):
        isR = cls == 'R'
        if isR:
            a('s_load_dwordx16 s[52:67], s[38:39], 0')
            a('s_load_dwordx16 s[68:83], s[38:39], 64')
            a('s_load_dwordx16 s[84:99], s[36:37], 0')
            a('v_cmpx_gt_u32 vcc, 625, v0')
            a(f'v_lshlrev_b32 v{E4}, 2, v0')
            a(f'v_lshlrev_b32 v{E8}, 3, v0')
            a('s_lshr_b32 s42, s2, 2')
            a(f'v_lshl_add_u32 v{T}, v0, 1, s42')
            a.vmem(f'global_load_ushort v{DI}, v{T}, s[40:41]', 'dist')
            a.vmem(f'buffer_load_dwordx2 v[{MO}:{MO+1}], v{E8}, s[8:11], s2 offen', 'mo')
            for i in range(8): a(f'v_mov_b32 v{P+i}, 0')
            a(f'ds_write_b32 v{E4}, v{E4} offset:{CNT[0]}')
            a(f'ds_write_b32 v{E4}, v{E4} offset:{CNT[1]}')
            a(f'v_lshlrev_b32 v{T}, 5, v0')
            a(f'ds_write_b128 v{T}, v[{P}:{P+3}] offset:{FB}')
            a(f'ds_write_b128 v{T}, v[{P}:{P+3}] offset:{FB+16}')
            a(f'v_add_u32 v{E8}, {M64}, v{E8}')
            a(f'v_add_u32 v{E8b}, 70000, v{E8}')
        bar()
        order = As + Bs
        decode(cls, order)
        stamp(a, cfg, 2, VS)
        A1 = [j for j in r1 if not isB(j)]; A2 = [j for j in r2 if not isB(j)]
        B1 = [j for j in r1 if isB(j)]; B2 = [j for j in r2 if isB(j)]
        ops = []
        if cfg.sched == 'a':
            ops += [('G', j) for j in A1]
            g2 = [('G', j) for j in A2]
            npre = cfg.gpre
            ops += g2[:npre]; g2 = g2[npre:]
            if isR and cfg.prepos == 0: ops.append(('PRE',))
            ops += [('G', j) for j in B1 + B2]
            w1 = [('W', j) for j in B1 + A1]
            keep = cfg.gpost
            mid = g2[:len(g2)-keep] if keep else g2
            post = g2[len(g2)-keep:] if keep else []
            n = 0
            for i, w in enumerate(w1):
                ops.append(w)
                while n < len(mid) and (n + 1) * len(w1) <= (i + 1) * len(mid): ops.append(mid[n]); n += 1
            ops += mid[n:]
            ops.append(('BAR',)); ops.append(('ST', 3))
            if not isR: ops += post
            if isR:
                ops.append(('RO', 0)); ops += post
            ops.append(('BAR',)); ops.append(('ST', 4))
            if isR and cfg.prepos == 1: ops.append(('PRE',))
            ops += [('W', j) for j in B2 + A2]
            ops.append(('BAR',)); ops.append(('ST', 5))
            if isR: ops += [('RO', 1), ('ST', 6), ('FIN',)]
        for o in ops:
            if o[0] == 'G': G(o[1])
            elif o[0] == 'W': W(o[1], cls)
            elif o[0] == 'PRE': PRE()
            elif o[0] == 'BAR': bar()
            elif o[0] == 'ST': stamp(a, cfg, o[1], VS)
            elif o[0] == 'RO': RO(o[1], [R(j) for j in (r1 if o[1] == 0 else range(8))][:8])
            elif o[0] == 'FIN': FIN()
        if cfg.diag:
            a.wait_vm0()
            stamp(a, cfg, 7, VS)
            if cfg.diag == 2:
                a('v_readlane_b32 s0, v121, 1')
                a('v_readlane_b32 s1, v121, 2')
                a('s_nop 4')
                a('s_load_dwordx2 s[98:99], s[0:1], 96')
                a('s_waitcnt lgkmcnt(0)')
            a('v_readlane_b32 s2, v121, 0')
            stamp_out(a, cfg, 1, VS, 1, 4, 2, 98)
        a('s_endpgm')
    body('R')
    a('k2_N:')
    a.vm, a.lg = save
    body('N')
    a('k2_end:')
    a('s_endpgm')
    return a.text(), 124 if cfg.diag else 120, LDS

def desc(name, vg):
    return f'''.amdhsa_kernel {name}
  .amdhsa_next_free_vgpr {vg}
  .amdhsa_next_free_sgpr 102
  .amdhsa_accum_offset {(vg+3)//4*4}
  .amdhsa_group_segment_fixed_size 0
  .amdhsa_kernarg_size 112
  .amdhsa_user_sgpr_count 2
  .amdhsa_user_sgpr_kernarg_segment_ptr 1
  .amdhsa_system_sgpr_workgroup_id_x 1
.end_amdhsa_kernel
'''

def build(cfg):
    t1, v1, l1 = k1(cfg); t2, v2, l2 = k2(cfg)
    n1, n2 = 'gemnet_bin_kernel', NAME + '_kernel'
    s = HDR
    ks = [(n1, t1, v1, l1), (n2, t2, v2, l2)]
    em = '; @launch kernel=empty_kernel grid=(1,1,1) block=(64,1,1) lds=0\n'
    s += em * cfg.epre
    for r in range(cfg.rep):
        s += f'; @launch kernel={n1} grid=(256,1,1) block=(1024,1,1) lds={l1}\n'
        s += f'; @launch kernel={n2} grid=(256,1,1) block=(1024,1,1) lds={l2}\n' * cfg.rep2
    s += em * cfg.epost
    if cfg.epre or cfg.epost: ks.append(('empty_kernel', '    s_endpgm\n', 8, 0))
    s += '.amdgcn_target "amdgcn-amd-amdhsa--gfx950"\n.text\n'
    for n, t, v, l in ks:
        s += f'.globl {n}\n.p2align 8\n.type {n},@function\n{n}:\n{t}'
    s += '.section .rodata,"a"\n'
    for n, t, v, l in ks: s += '.p2align 6\n' + desc(n, v)
    return s

if __name__ == '__main__':
    ap = argparse.ArgumentParser()
    ap.add_argument('-o', default='cdna_kernels/' + NAME + '.s')
    ap.add_argument('kv', nargs='*')
    x = ap.parse_args()
    cfg = Cfg(); cfg.epre = 0; cfg.epost = 0; cfg.rep = 1; cfg.rep2 = 1; cfg.k1b = 0; cfg.gpre = 2; cfg.gpost = 0; cfg.prepos = 1
    for kv in x.kv:
        k, v = kv.split('=')
        try: v = int(v, 0)
        except ValueError: v = v.replace('_', ' ')
        setattr(cfg, k, v)
    open(x.o, 'w').write(build(cfg))
```

```python
import sys, argparse
from asmlib import Asm

NAME = 'standalone__molecular_angular_gemnet__graph'
HDR = open('cdna_kernels/' + NAME + '.s.ref').read().split('; Override launch')[0]

STRIDE = 120064
OFFB = 256 * STRIDE
DIAGB = 64 << 20
WSZ = 0x10000000
CENTERS = [0x00000000, 0x3e120000, 0x3e920000, 0x3edb0000, 0x3f120000, 0x3f370000, 0x3f5b0000, 0x3f800000]

class Cfg:
    nB = 8; n1 = 8; cap = 16; diag = False; sched = 'a'; ldnt = ' nt'; stf = ' sc1'; wsoff = 0

def srd(a, r, size):
    a(f's_mov_b32 s{r+2}, {size}')
    a(f's_mov_b32 s{r+3}, 0x20000')

def stamp(a, cfg, k, vs):
    if not cfg.diag: return
    a('s_memrealtime s[100:101]')
    a.wait_lg0()
    a(f'v_writelane_b32 v{vs}, s100, {k}')

def stamp_out(a, cfg, kern, vs, vt, wsrd, swg, dbg=0):
    if not cfg.diag: return
    if cfg.diag == 2:
        a(f'v_readlane_b32 s100, v{vs}, 0')
        a('s_not_b32 s100, s100')
        a(f'v_writelane_b32 v{vs}, s100, {6 if kern == 0 else 2}')
        a('s_mov_b64 exec, -1')
        a(f'v_lshlrev_b32 v0, 2, v0')
        a('v_cmpx_gt_u32 vcc, 32, v0')
        l = a.label(f'dg{kern}')
        a(f's_cbranch_execz {l}')
        a(f'global_atomic_umax v0, v{vs}, s[{dbg}:{dbg+1}] offset:{512 if kern == 0 else 32}')
        a(f'{l}:')
        return
    a('s_mov_b64 exec, 0xffff')
    a(f'v_lshrrev_b32 v{vt}, 6, v0')
    a(f'v_lshlrev_b32 v{vt}, 6, v{vt}')
    a(f'v_and_b32 v0, 63, v0')
    a(f'v_lshl_add_u32 v{vt}, v0, 2, v{vt}')
    a(f's_lshl_b32 s100, s{swg}, 10')
    a(f's_add_u32 s100, s100, {DIAGB + kern * 262144}')
    a(f'buffer_store_dword v{vs}, v{vt}, s[{wsrd}:{wsrd+3}], s100 offen')

def k1(cfg):
    a = Asm()
    OUT, IN, ANG, BIN, RK, BS, REC, VS = 4, 14, 24, 30, 40, 50, 60, 100
    CNT, BASE, RECB = 0, 1024, 2048
    a('s_cmp_ge_u32 s2, 256')
    a('s_cbranch_scc1 k1_end')
    a('s_load_dwordx2 s[16:17], s[0:1], 16')
    a('s_load_dwordx2 s[20:21], s[0:1], 8')
    a('s_load_dwordx2 s[24:25], s[0:1], 32')
    a('s_load_dwordx2 s[28:29], s[0:1], 0')
    a('s_load_dwordx2 s[32:33], s[0:1], 104')
    if cfg.diag == 2:
        a('s_load_dwordx2 s[60:61], s[0:1], 96')
        a(f'v_mov_b32 v{VS}, 0')
    stamp(a, cfg, 0, VS)
    srd(a, 16, 10240000); srd(a, 20, 10240000); srd(a, 24, 5120000); srd(a, 28, 1280000); srd(a, 32, WSZ)
    a('v_lshlrev_b32 v1, 3, v0')
    a('v_lshlrev_b32 v2, 2, v0')
    a('s_mul_i32 s40, s2, 40000')
    for c in range(1, 5): a(f's_add_u32 s{40+c}, s40, {8000*c}')
    for c in range(5): a(f's_lshr_b32 s{45+c}, s{40+c}, 1')
    a('v_mov_b32 v3, 0')
    a('v_cmp_gt_u32 vcc, 256, v0')
    a('s_and_saveexec_b64 s[4:5], vcc')
    a.lds(f'ds_write_b32 v2, v3 offset:{CNT}')
    a('s_mov_b64 exec, s[4:5]')
    a('v_mov_b32 v3, 1')
    a('v_cmp_gt_u32 vcc, 1000, v0')
    a('s_and_b64 exec, exec, vcc')
    a('s_mov_b64 s[6:7], exec')
    a(f's_mul_i32 s50, s2, {STRIDE}')
    if cfg.wsoff: a(f's_add_u32 s50, s50, {cfg.wsoff}')
    for i in range(1, 8): a(f's_add_u32 s{50+i}, s50, {16000*i}')
    a('s_mov_b32 s8, 6871948')
    a('s_mov_b32 s9, -625')
    a('s_mov_b32 s10, 0x3ff')
    a(f's_mov_b32 s11, {RECB}')
    a('s_lshl_b32 s12, s2, 10')
    a(f's_add_u32 s12, s12, {OFFB + cfg.wsoff}')
    a.wait_lg0()
    if cfg.nB > 0:
        a(f's_cmp_lt_u32 s2, {16*cfg.nB}')
        a('s_cbranch_scc1 k1_B')

    def ld_out(c): a.vmem(f'buffer_load_dwordx2 v[{OUT+2*c}:{OUT+2*c+1}], v1, s[16:19], s{40+c} offen{cfg.ldnt}', f'o{c}')
    def ld_in(c): a.vmem(f'buffer_load_dwordx2 v[{IN+2*c}:{IN+2*c+1}], v1, s[20:23], s{40+c} offen{cfg.ldnt}', f'i{c}')
    def ld_ang(c): a.vmem(f'buffer_load_dword v{ANG+c}, v2, s[24:27], s{45+c} offen{cfg.ldnt}', f'a{c}')
    def rank(c):
        a.wait(vm=[f'o{c}'])
        for i in (2*c, 2*c+1):
            a(f'v_mul_hi_u32_u24 v{BIN+i}, s8, v{OUT+i}')
            a(f'v_mad_i32_i24 v{OUT+i}, v{BIN+i}, s9, v{OUT+i}')
            a(f'v_lshlrev_b32 v{BIN+i}, 2, v{BIN+i}')
            a.lds(f'ds_add_rtn_u32 v{RK+i}, v{BIN+i}, v3 offset:{CNT}', f'r{i}')
    def scan(RS, tag):
        a.wait_lg0()
        stamp(a, cfg, 1, VS)
        a('s_barrier')
        a('v_readfirstlane_b32 s3, v0')
        a('s_cmp_ge_u32 s3, 64')
        a(f's_cbranch_scc1 k1_noscan{tag}')
        T = 80
        a(f'v_lshlrev_b32 v{T+12}, 4, v0')
        a(f'ds_read_b128 v[{T}:{T+3}], v{T+12} offset:{CNT}')
        a('s_waitcnt lgkmcnt(0)')
        a(f'v_add_u32 v{T+5}, v{T}, v{T+1}')
        a(f'v_add_u32 v{T+6}, v{T+5}, v{T+2}')
        a(f'v_add_u32 v{T+7}, v{T+6}, v{T+3}')
        a(f'v_mov_b32 v{T+4}, v{T+7}')
        for d in ('row_shr:1 row_mask:0xf', 'row_shr:2 row_mask:0xf', 'row_shr:4 row_mask:0xf', 'row_shr:8 row_mask:0xf',
                  'row_bcast:15 row_mask:0xa', 'row_bcast:31 row_mask:0xc'):
            a(f'v_add_u32_dpp v{T+4}, v{T+4}, v{T+4} {d} bank_mask:0xf')
        a(f'v_sub_u32 v{T+4}, v{T+4}, v{T+7}')
        a(f'v_add_u32 v{T+7}, v{T+4}, v{T+6}')
        a(f'v_add_u32 v{T+6}, v{T+4}, v{T+5}')
        a(f'v_add_u32 v{T+5}, v{T+4}, v{T}')
        for i in range(4): a(f'v_mad_u32_u24 v{T+8+i}, v{T+4+i}, {RS}, s11')
        a(f'ds_write_b128 v{T+12}, v[{T+8}:{T+11}] offset:{BASE}')
        for i in range(4): a(f'v_lshl_or_b32 v{T+i}, v{T+i}, 16, v{T+4+i}')
        a(f'buffer_store_dwordx4 v[{T}:{T+3}], v{T+12}, s[32:35], s12 offen{cfg.stf}')
        a('s_waitcnt lgkmcnt(0)')
        a(f'k1_noscan{tag}:')
        a('s_barrier')
        for i in range(10): a.lds(f'ds_read_b32 v{BS+i}, v{BIN+i} offset:{BASE}', f'b{i}')
        for i in range(10):
            a.wait(lg=[f'b{i}'])
            a(f'v_mad_u32_u24 v{RK+i}, v{RK+i}, {RS}, v{BS+i}')
        stamp(a, cfg, 2, VS)
    def cosd1(c, dst):
        a.wait(vm=[f'a{c}'])
        a(f'v_lshlrev_b32 v{BS}, 16, v{ANG+c}')
        a(f'v_and_b32 v{BS+1}, 0xffff0000, v{ANG+c}')
        for h in range(2): a(f'v_mul_f32 v{BS+h}, 0.15915494, v{BS+h}')
        for h in range(2): a(f'v_fract_f32 v{BS+h}, v{BS+h}')
        for h in range(2): a(f'v_cos_f32 v{BS+h}, v{BS+h}')
        for h in range(2): a(f'v_bfi_b32 v{dst(2*c+h)}, s10, v{OUT+2*c+h}, v{BS+h}')
    def copyout(n16, tag):
        a.wait_lg0()
        stamp(a, cfg, 3, VS)
        a('s_barrier')
        a('v_lshlrev_b32 v1, 4, v0')
        a(f'v_add_u32 v2, 64000, v1')
        full, rem = divmod(n16, 1000)
        n = full + (1 if rem else 0)
        for i in range(n):
            b, o = (1, RECB + 16000*i) if i < 3 else (2, RECB + 16000*i - 64000)
            if o < 0: b, o = 1, RECB + 16000*i
            a.lds(f'ds_read_b128 v[{4+4*i}:{7+4*i}], v{b} offset:{o}', f'c{i}')
        for i in range(n):
            if i == full:
                a(f'v_cmp_gt_u32 vcc, {rem}, v0')
                a('s_and_b64 exec, exec, vcc')
                a(f's_cbranch_execz k1_skip{tag}')
            a.wait(lg=[f'c{i}'])
            a.vmem(f'buffer_store_dwordx4 v[{4+4*i}:{7+4*i}], v1, s[32:35], s{50+i} offen{cfg.stf}', f's{i}')
        a(f'k1_skip{tag}:')
        if cfg.diag:
            stamp(a, cfg, 4, VS)
            a.wait_vm0()
            stamp(a, cfg, 5, VS)
            stamp_out(a, cfg, 0, VS, 1, 32, 2, 60)
        a('s_endpgm')
        a.vm = []; a.lg = []

    if cfg.nB < 16:
        for c in range(5): ld_out(c)
        for c in range(5): ld_in(c); ld_ang(c)
        a('s_barrier')
        for c in range(5): rank(c)
        scan(8, 'A')
        for c in range(5):
            cosd1(c, lambda i: REC + 2*i)
            for i in (2*c, 2*c+1):
                a(f'v_lshlrev_b32 v{REC+2*i+1}, 3, v{IN+i}')
                a.lds(f'ds_write_b64 v{RK+i}, v[{REC+2*i}:{REC+2*i+1}]')
        copyout(5000, 'A')
    if cfg.nB > 0:
        a('k1_B:')
        def gath(c):
            a.wait(vm=[f'i{c}'])
            for i in (2*c, 2*c+1):
                a(f'v_lshlrev_b32 v{IN+i}, 3, v{IN+i}')
                a.vmem(f'buffer_load_dwordx2 v[{REC+2*i}:{REC+2*i+1}], v{IN+i}, s[28:31], 0 offen', f'g{i}')
        for c in range(5): ld_in(c); ld_out(c)
        for c in range(5): ld_ang(c)
        a('s_barrier')
        if cfg.k1b == 0:
            for c in range(5): gath(c); rank(c)
            scan(12, 'B')
        else:
            gath(0); gath(1)
            for c in range(5): rank(c)
            scan(12, 'B')
            for c in range(2, 5): gath(c)
        for c in range(5):
            cosd1(c, lambda i: OUT + i)
            for i in (2*c, 2*c+1): a.lds(f'ds_write_b32 v{RK+i}, v{OUT+i} offset:8')
        for i in range(10):
            a.wait(vm=[f'g{i}'])
            a.lds(f'ds_write2_b32 v{RK+i}, v{REC+2*i}, v{REC+2*i+1} offset0:0 offset1:1')
        copyout(7500, 'B')
    a('k1_end:')
    a('s_endpgm')
    return a.text(), 104 if cfg.diag else 96, RECB + 120000

def k2(cfg):
    a = Asm()
    CAP = cfg.cap
    CNT = [0, 2560]; FB = 5120; C32 = 25120; M64 = C32 + CAP*2500
    LDS = M64 + CAP*5000
    assert M64 <= 65535 and LDS <= 163840
    R = lambda j: 8 + 4*j
    P, A_, G_, MO, DI = 72, 80, 88, 92, 94
    VSO, VCN, E4, E8, E8b, DF = 95, 96, 97, 98, 99, 100
    T = 102
    VS = 120
    isB = lambda j: j < cfg.nB
    rnd = lambda j: 0 if j < cfg.n1 else 1
    a('s_cmp_ge_u32 s2, 256')
    a('s_cbranch_scc1 k2_end')
    a('s_load_dwordx2 s[4:5], s[0:1], 104')
    a('s_load_dwordx2 s[8:9], s[0:1], 0')
    a('s_load_dwordx2 s[40:41], s[0:1], 24')
    a('s_load_dwordx4 s[36:39], s[0:1], 56')
    a('s_load_dwordx2 s[12:13], s[0:1], 88')
    a('s_load_dwordx4 s[16:19], s[0:1], 72')
    if cfg.diag:
        a('v_writelane_b32 v121, s2, 0')
        a('v_writelane_b32 v121, s0, 1')
        a('v_writelane_b32 v121, s1, 2')
        a(f'v_mov_b32 v{VS}, 0')
    stamp(a, cfg, 0, VS)
    a('v_lshrrev_b32 v4, 6, v0')
    a('v_and_b32 v5, 63, v0')
    a('s_and_b32 s3, s2, 7')
    a('s_lshl_b32 s3, s3, 5')
    a('s_lshr_b32 s2, s2, 3')
    a('s_add_u32 s2, s2, s3')
    a('v_readfirstlane_b32 s3, v4')
    srd(a, 4, WSZ); srd(a, 8, 1280000); srd(a, 12, 1280000)
    a('v_lshlrev_b32 v6, 14, v5')
    a('s_lshl_b32 s42, s3, 8')
    a('s_add_u32 s42, s42, s2')
    a('s_lshl_b32 s42, s42, 2')
    a(f's_add_u32 s42, s42, {OFFB + cfg.wsoff}')
    a('s_mov_b64 exec, 0xffff')
    a.wait_lg0()
    a.vmem(f'buffer_load_dword v{VCN}, v6, s[4:7], s42 offen', 'off')
    a('s_mov_b64 exec, -1')
    a('v_lshlrev_b32 v1, 3, v5')
    a('v_mul_u32_u24 v2, 12, v5')
    a('v_mov_b32 v3, 2500')
    a('v_lshl_add_u32 v6, v5, 4, v4')
    a(f'v_mul_u32_u24 v6, {STRIDE}, v6')
    if cfg.wsoff: a(f'v_add_u32 v6, {cfg.wsoff}, v6')
    a(f'v_cmp_gt_u32 vcc, {cfg.nB}, v5')
    a('v_cndmask_b32 v7, 8, 12, vcc')
    a('s_mul_i32 s2, s2, 5000')
    a('s_cmp_ge_u32 s3, 10')
    a('s_cbranch_scc1 k2_N')
    save = (list(a.vm), list(a.lg))

    def fbadd(r):
        a(f'v_and_b32 v{T}, 0x3ff, v{r+2}')
        a(f'v_lshlrev_b32 v{T}, 5, v{T}')
        a(f'v_fma_f32 v{T+1}, v{r+2}, v{r+2}, -0.5')
        for k in range(4):
            if k & 1: a(f'v_and_b32 v{T+2}, 0xffff0000, v{r+k//2}')
            else: a(f'v_lshlrev_b32 v{T+2}, 16, v{r+k//2}')
            a(f'v_mul_f32 v{T+3}, v{r+2}, v{T+2}')
            a(f'ds_add_f32 v{T}, v{T+3} offset:{FB+4*k}')
            a(f'v_mul_f32 v{T+4}, v{T+1}, v{T+2}')
            a(f'ds_add_f32 v{T}, v{T+4} offset:{FB+16+4*k}')
    def ex(j): a(f's_bfm_b64 exec, s{20+j}, 0')
    def L(j):
        ex(j)
        if isB(j): a.vmem(f'buffer_load_dwordx3 v[{R(j)}:{R(j)+2}], v2, s[4:7], s{36+j} offen', f'L{j}')
        else: a.vmem(f'buffer_load_dwordx2 v[{R(j)+2}:{R(j)+3}], v1, s[4:7], s{36+j} offen', f'L{j}')
    def G(j):
        ex(j)
        a.wait(vm=[f'L{j}'])
        if not isB(j): a.vmem(f'buffer_load_dwordx2 v[{R(j)}:{R(j)+1}], v{R(j)+3}, s[8:11], 0 offen', f'G{j}')
        a(f'v_and_b32 v{T}, 0x3ff, v{R(j)+2}')
        a(f'v_lshlrev_b32 v{T}, 2, v{T}')
        a.lds(f'ds_add_rtn_u32 v{R(j)+3}, v{T}, v3 offset:{CNT[rnd(j)]}', f'r{j}')
    def W(j, cls):
        ex(j)
        a.wait(vm=[f'G{j}'], lg=[f'r{j}'])
        a(f'v_cmp_le_u32 vcc, {CAP*2500}, v{R(j)+3}')
        a(f'v_lshlrev_b32 v{T+6}, 1, v{R(j)+3}')
        a(f's_cbranch_vccnz k2_ov{cls}{j}')
        a(f'k2_ovr{cls}{j}:')
        a.lds(f'ds_write_b32 v{R(j)+3}, v{R(j)+2} offset:{C32}')
        a.lds(f'ds_write_b64 v{T+6}, v[{R(j)}:{R(j)+1}] offset:{M64}')
        with a.ool():
            a(f'k2_ov{cls}{j}:')
            a('s_and_saveexec_b64 s[0:1], vcc')
            fbadd(R(j))
            a('s_andn2_b64 exec, s[0:1], vcc')
            a(f's_branch k2_ovr{cls}{j}')
    def decode(cls, order):
        a.wait(vm=['off'])
        stamp(a, cfg, 1, VS)
        a('s_mov_b64 exec, 0xffff')
        a(f'v_and_b32 v{VSO}, 0xffff, v{VCN}')
        a(f'v_lshrrev_b32 v{VCN}, 16, v{VCN}')
        a(f'v_mad_u32_u24 v{VSO}, v{VSO}, v7, v6')
        a(f'v_min_u32 v{T}, 63, v{VCN}')
        a(f'v_cmp_lt_u32 vcc, 63, v{VCN}')
        D = 3
        for n in range(16 + D):
            if n < 16:
                j = order[n]
                a(f'v_readlane_b32 s{36+j}, v{VSO}, {j}')
                a(f'v_readlane_b32 s{20+j}, v{T}, {j}')
            if n >= D: L(order[n-D])
        a(f's_cbranch_vccnz k2_left{cls}')
        a(f'k2_leftr{cls}:')
        with a.ool():
            U = T + 8
            a(f'k2_left{cls}:')
            a('s_mov_b64 s[36:37], vcc')
            a(f'k2_lj{cls}:')
            a('s_ff1_i32_b64 s38, s[36:37]')
            a('s_bitset0_b64 s[36:37], s38')
            a(f'v_readlane_b32 s39, v{VSO}, s38')
            a(f'v_readlane_b32 s40, v{VCN}, s38')
            a(f'v_readlane_b32 s41, v7, s38')
            a('s_nop 4')
            a('s_mul_i32 s41, s41, 63')
            a('s_sub_u32 s40, s40, 63')
            a(f'k2_lc{cls}:')
            a('s_add_u32 s39, s39, s41')
            a('s_min_u32 s42, s40, 63')
            a('s_bfm_b64 exec, s42, 0')
            a(f's_cmp_lt_u32 s38, {cfg.nB}')
            a(f's_cbranch_scc1 k2_lb{cls}')
            a(f'buffer_load_dwordx2 v[{U+2}:{U+3}], v1, s[4:7], s39 offen')
            a('s_waitcnt vmcnt(0)')
            a(f'buffer_load_dwordx2 v[{U}:{U+1}], v{U+3}, s[8:11], 0 offen')
            a(f's_branch k2_ld{cls}')
            a(f'k2_lb{cls}:')
            a(f'buffer_load_dwordx3 v[{U}:{U+2}], v2, s[4:7], s39 offen')
            a(f'k2_ld{cls}:')
            a('s_waitcnt vmcnt(0)')
            fbadd(U)
            a('s_sub_u32 s40, s40, s42')
            a('s_cmp_lg_u32 s40, 0')
            a(f's_cbranch_scc1 k2_lc{cls}')
            a('s_cmp_lg_u64 s[36:37], 0')
            a(f's_cbranch_scc1 k2_lj{cls}')
            a(f's_branch k2_leftr{cls}')
    def bar():
        a.wait_lg0(); a('s_barrier')
    def exR(): a('s_mov_b64 exec, s[98:99]') if False else None
    def edge_exec():
        a('s_mov_b64 exec, -1')
        a('v_cmpx_gt_u32 vcc, 625, v0')
    def rnd2(x, y):
        a(f'v_cvt_pk_bf16_f32 v{y}, v{x}, v{y}')
        a(f'v_lshlrev_b32 v{x}, 16, v{y}')
        a(f'v_and_b32 v{y}, 0xffff0000, v{y}')
    bc = lambda h: f'op_sel:[{h},0,0] op_sel_hi:[{h},1,1]'
    bcm = lambda h: f'op_sel:[{h},0] op_sel_hi:[{h},1]'
    def unpack(dst, src):
        a(f's_lshl_b32 s{dst}, s{src}, 16')
        a(f's_and_b32 s{dst+1}, s{src}, 0xffff0000')
    def PRE(parts=None):
        edge_exec()
        a.wait(vm=['dist'])
        a.wait_lg0()
        a(f'v_lshlrev_b32 v{DI}, 16, v{DI}')
        tp = [0]
        for r0 in range(0, 8, 2):
            x, y = T + 8, T + 9
            for h, v in enumerate((x, y)): a(f'v_subrev_f32 v{v}, {hex(CENTERS[r0+h])}, v{DI}')
            rnd2(x, y)
            a(f'v_pk_mul_f32 v[{x}:{y}], v[{x}:{y}], v[{x}:{y}]')
            rnd2(x, y)
            for v in (x, y): a(f'v_mul_f32 v{v}, 0xc1200000, v{v}')
            rnd2(x, y)
            for v in (x, y): a(f'v_mul_f32 v{v}, 0x3fb8aa3b, v{v}')
            for v in (x, y): a(f'v_exp_f32 v{v}, v{v}')
            rnd2(x, y)
            for h in range(2):
                r = r0 + h
                for (dst, src) in [(A_, 52+4*r), (A_+2, 53+4*r), (A_+4, 54+4*r), (A_+6, 55+4*r), (G_, 84+2*r), (G_+2, 85+2*r)]:
                    s = 36 + 2*(tp[0] % 8); tp[0] += 1
                    unpack(s, src)
                    if r == 0: a(f'v_pk_mul_f32 v[{dst}:{dst+1}], v[{x}:{y}], s[{s}:{s+1}] {bcm(h)}')
                    else: a(f'v_pk_fma_f32 v[{dst}:{dst+1}], v[{x}:{y}], s[{s}:{s+1}], v[{dst}:{dst+1}] {bc(h)}')
        a('s_load_dwordx8 s[52:59], s[16:17], 0')
        a('s_load_dwordx8 s[60:67], s[18:19], 0')
        for d in (4, 6): a(f'v_pk_add_f32 v[{A_+d}:{A_+d+1}], v[{A_+d}:{A_+d+1}], v[{A_+d}:{A_+d+1}]')
        rnd2(G_, G_+1); rnd2(G_+2, G_+3)
    def RO(rd, bufs, inter=()):
        inter = list(inter)
        edge_exec()
        a.lds(f'ds_read_b32 v{DF}, v{E4} offset:{CNT[rd]}', 'cnt')
        nb = len(bufs)
        def rdslot(s):
            b = bufs[s % nb]
            a.lds(f'ds_read_b32 v{b+2}, v{E4} offset:{C32+2500*s}', f'c{s}')
            if s <= 13: a.lds(f'ds_read_b64 v[{b}:{b+1}], v{E8} offset:{5000*s}', f'm{s}')
            else: a.lds(f'ds_read_b64 v[{b}:{b+1}], v{E8b} offset:{5000*(s-14)}', f'm{s}')
        D = min(nb - 1, 6)
        for s in range(D): rdslot(s)
        a.wait(lg=['cnt'])
        a(f'v_sub_u32 v{DF}, v{DF}, v{E4}')
        for s in range(CAP):
            b = bufs[s % nb]
            a(f'v_cmpx_lt_u32 vcc, {2500*s}, v{DF}')
            if s >= CAP - 6: a(f's_cbranch_execz k2_rodone{rd}')
            if s + D < CAP: rdslot(s + D)
            a.wait(lg=[f'm{s}'])
            a(f'v_fma_f32 v{b+3}, v{b+2}, v{b+2}, -0.5')
            a(f'v_lshlrev_b32 v{T}, 16, v{b}')
            a(f'v_and_b32 v{T+1}, 0xffff0000, v{b}')
            a(f'v_lshlrev_b32 v{T+2}, 16, v{b+1}')
            a(f'v_and_b32 v{T+3}, 0xffff0000, v{b+1}')
            for l in range(2):
                for kk in range(2):
                    p = P + 4*l + 2*kk
                    a(f'v_pk_fma_f32 v[{p}:{p+1}], v[{b+2}:{b+3}], v[{T+2*kk}:{T+2*kk+1}], v[{p}:{p+1}] {bc(l)}')
        a(f'k2_rodone{rd}:')
        a.wait_lg0()
    def FIN():
        edge_exec()
        a(f'v_lshlrev_b32 v{E8}, 5, v0')
        a.lds(f'ds_read_b128 v[8:11], v{E8} offset:{FB}', 'f0')
        a.lds(f'ds_read_b128 v[12:15], v{E8} offset:{FB+16}', 'f1')
        for i in range(8): unpack(36 + 2*i, 52 + i)
        for i in range(8): unpack(68 + 2*i, 60 + i)
        a.wait_lg0()
        for i in range(4): a(f'v_pk_add_f32 v[{P+2*i}:{P+2*i+1}], v[{P+2*i}:{P+2*i+1}], v[{8+2*i}:{9+2*i}]')
        S = 16
        for k in range(4):
            for l in range(2):
                for dd in range(2):
                    src = P + 4*l + (k & 2); s = 36 + 4*k + 2*dd; d = S + 4*l + 2*dd
                    if k == 0: a(f'v_pk_mul_f32 v[{d}:{d+1}], v[{src}:{src+1}], s[{s}:{s+1}] {bcm(k&1)}')
                    else: a(f'v_pk_fma_f32 v[{d}:{d+1}], v[{src}:{src+1}], s[{s}:{s+1}], v[{d}:{d+1}] {bc(k&1)}')
        for dd in (0, 2): a(f'v_pk_mul_f32 v[{S+dd}:{S+dd+1}], v[{S+dd}:{S+dd+1}], v[{A_+dd}:{A_+dd+1}]')
        for dd in (0, 2): a(f'v_pk_fma_f32 v[{S+dd}:{S+dd+1}], v[{S+4+dd}:{S+5+dd}], v[{A_+4+dd}:{A_+5+dd}], v[{S+dd}:{S+dd+1}]')
        rnd2(S, S+1); rnd2(S+2, S+3)
        U = 24
        for k in range(4):
            for dd in range(2):
                src = S + (k & 2); s = 68 + 4*k + 2*dd; d = U + 2*dd
                if k == 0: a(f'v_pk_mul_f32 v[{d}:{d+1}], v[{src}:{src+1}], s[{s}:{s+1}] {bcm(k&1)}')
                else: a(f'v_pk_fma_f32 v[{d}:{d+1}], v[{src}:{src+1}], s[{s}:{s+1}], v[{d}:{d+1}] {bc(k&1)}')
        rnd2(U, U+1); rnd2(U+2, U+3)
        for dd in (0, 2): a(f'v_pk_mul_f32 v[{U+dd}:{U+dd+1}], v[{U+dd}:{U+dd+1}], v[{G_+dd}:{G_+dd+1}]')
        rnd2(U, U+1); rnd2(U+2, U+3)
        a.wait(vm=['mo'])
        a(f'v_lshlrev_b32 v{S}, 16, v{MO}')
        a(f'v_and_b32 v{S+1}, 0xffff0000, v{MO}')
        a(f'v_lshlrev_b32 v{S+2}, 16, v{MO+1}')
        a(f'v_and_b32 v{S+3}, 0xffff0000, v{MO+1}')
        for dd in (0, 2): a(f'v_pk_add_f32 v[{U+dd}:{U+dd+1}], v[{U+dd}:{U+dd+1}], v[{S+dd}:{S+dd+1}]')
        a(f'v_cvt_pk_bf16_f32 v{U}, v{U}, v{U+1}')
        a(f'v_cvt_pk_bf16_f32 v{U+1}, v{U+2}, v{U+3}')
        a(f'v_lshlrev_b32 v{E8}, 3, v0')
        a.vmem(f'buffer_store_dwordx2 v[{U}:{U+1}], v{E8}, s[12:15], s2 offen', 'st')

    r1 = [j for j in range(16) if rnd(j) == 0]; r2 = [j for j in range(16) if rnd(j) == 1]
    As = [j for j in range(16) if not isB(j)]; Bs = [j for j in range(16) if isB(j)]
    def body(cls):
        isR = cls == 'R'
        if isR:
            a('s_load_dwordx16 s[52:67], s[38:39], 0')
            a('s_load_dwordx16 s[68:83], s[38:39], 64')
            a('s_load_dwordx16 s[84:99], s[36:37], 0')
            a('v_cmpx_gt_u32 vcc, 625, v0')
            a(f'v_lshlrev_b32 v{E4}, 2, v0')
            a(f'v_lshlrev_b32 v{E8}, 3, v0')
            a('s_lshr_b32 s42, s2, 2')
            a(f'v_lshl_add_u32 v{T}, v0, 1, s42')
            a.vmem(f'global_load_ushort v{DI}, v{T}, s[40:41]', 'dist')
            a.vmem(f'buffer_load_dwordx2 v[{MO}:{MO+1}], v{E8}, s[8:11], s2 offen', 'mo')
            for i in range(8): a(f'v_mov_b32 v{P+i}, 0')
            a(f'ds_write_b32 v{E4}, v{E4} offset:{CNT[0]}')
            a(f'ds_write_b32 v{E4}, v{E4} offset:{CNT[1]}')
            a(f'v_lshlrev_b32 v{T}, 5, v0')
            a(f'ds_write_b128 v{T}, v[{P}:{P+3}] offset:{FB}')
            a(f'ds_write_b128 v{T}, v[{P}:{P+3}] offset:{FB+16}')
            a(f'v_add_u32 v{E8}, {M64}, v{E8}')
            a(f'v_add_u32 v{E8b}, 70000, v{E8}')
        bar()
        order = As + Bs
        decode(cls, order)
        stamp(a, cfg, 2, VS)
        A1 = [j for j in r1 if not isB(j)]; A2 = [j for j in r2 if not isB(j)]
        B1 = [j for j in r1 if isB(j)]; B2 = [j for j in r2 if isB(j)]
        ops = []
        if cfg.sched == 'a':
            ops += [('G', j) for j in A1]
            g2 = [('G', j) for j in A2]
            npre = cfg.gpre
            ops += g2[:npre]; g2 = g2[npre:]
            if isR and cfg.prepos == 0: ops.append(('PRE',))
            ops += [('G', j) for j in B1 + B2]
            w1 = [('W', j) for j in B1 + A1]
            keep = cfg.gpost
            mid = g2[:len(g2)-keep] if keep else g2
            post = g2[len(g2)-keep:] if keep else []
            n = 0
            for i, w in enumerate(w1):
                ops.append(w)
                while n < len(mid) and (n + 1) * len(w1) <= (i + 1) * len(mid): ops.append(mid[n]); n += 1
            ops += mid[n:]
            ops.append(('BAR',)); ops.append(('ST', 3))
            if not isR: ops += post
            if isR:
                ops.append(('RO', 0)); ops += post
            ops.append(('BAR',)); ops.append(('ST', 4))
            if isR and cfg.prepos == 1: ops.append(('PRE',))
            ops += [('W', j) for j in B2 + A2]
            ops.append(('BAR',)); ops.append(('ST', 5))
            if isR: ops += [('RO', 1), ('ST', 6), ('FIN',)]
        for o in ops:
            if o[0] == 'G': G(o[1])
            elif o[0] == 'W': W(o[1], cls)
            elif o[0] == 'PRE': PRE()
            elif o[0] == 'BAR': bar()
            elif o[0] == 'ST': stamp(a, cfg, o[1], VS)
            elif o[0] == 'RO': RO(o[1], [R(j) for j in (r1 if o[1] == 0 else range(8))][:8])
            elif o[0] == 'FIN': FIN()
        if cfg.diag:
            a.wait_vm0()
            stamp(a, cfg, 7, VS)
            if cfg.diag == 2:
                a('v_readlane_b32 s0, v121, 1')
                a('v_readlane_b32 s1, v121, 2')
                a('s_nop 4')
                a('s_load_dwordx2 s[98:99], s[0:1], 96')
                a('s_waitcnt lgkmcnt(0)')
            a('v_readlane_b32 s2, v121, 0')
            stamp_out(a, cfg, 1, VS, 1, 4, 2, 98)
        a('s_endpgm')
    body('R')
    a('k2_N:')
    a.vm, a.lg = save
    body('N')
    a('k2_end:')
    a('s_endpgm')
    return a.text(), 124 if cfg.diag else 120, LDS

def desc(name, vg):
    return f'''.amdhsa_kernel {name}
  .amdhsa_next_free_vgpr {vg}
  .amdhsa_next_free_sgpr 102
  .amdhsa_accum_offset {(vg+3)//4*4}
  .amdhsa_group_segment_fixed_size 0
  .amdhsa_kernarg_size 112
  .amdhsa_user_sgpr_count 2
  .amdhsa_user_sgpr_kernarg_segment_ptr 1
  .amdhsa_system_sgpr_workgroup_id_x 1
.end_amdhsa_kernel
'''

def build(cfg):
    t1, v1, l1 = k1(cfg); t2, v2, l2 = k2(cfg)
    n1, n2 = 'gemnet_bin_kernel', NAME + '_kernel'
    s = HDR
    ks = [(n1, t1, v1, l1), (n2, t2, v2, l2)]
    em = '; @launch kernel=empty_kernel grid=(1,1,1) block=(64,1,1) lds=0\n'
    s += em * cfg.epre
    for r in range(cfg.rep):
        s += f'; @launch kernel={n1} grid=(256,1,1) block=(1024,1,1) lds={l1}\n'
        s += f'; @launch kernel={n2} grid=(256,1,1) block=(1024,1,1) lds={l2}\n' * cfg.rep2
    s += em * cfg.epost
    if cfg.epre or cfg.epost: ks.append(('empty_kernel', '    s_endpgm\n', 8, 0))
    s += '.amdgcn_target "amdgcn-amd-amdhsa--gfx950"\n.text\n'
    for n, t, v, l in ks:
        s += f'.globl {n}\n.p2align 8\n.type {n},@function\n{n}:\n{t}'
    s += '.section .rodata,"a"\n'
    for n, t, v, l in ks: s += '.p2align 6\n' + desc(n, v)
    return s

if __name__ == '__main__':
    ap = argparse.ArgumentParser()
    ap.add_argument('-o', default='cdna_kernels/' + NAME + '.s')
    ap.add_argument('kv', nargs='*')
    x = ap.parse_args()
    cfg = Cfg(); cfg.epre = 0; cfg.epost = 0; cfg.rep = 1; cfg.rep2 = 1; cfg.k1b = 0; cfg.gpre = 2; cfg.gpost = 0; cfg.prepos = 1
    for kv in x.kv:
        k, v = kv.split('=')
        try: v = int(v, 0)
        except ValueError: v = v.replace('_', ' ')
        setattr(cfg, k, v)
    open(x.o, 'w').write(build(cfg))
```

```python
import sys, argparse
from asmlib import Asm

NAME = 'standalone__molecular_angular_gemnet__graph'
HDR = open('cdna_kernels/' + NAME + '.s.ref').read().split('; Override launch')[0]

STRIDE = 120064
OFFB = 256 * STRIDE
DIAGB = 64 << 20
WSZ = 0x10000000
CENTERS = [0x00000000, 0x3e120000, 0x3e920000, 0x3edb0000, 0x3f120000, 0x3f370000, 0x3f5b0000, 0x3f800000]

class Cfg:
    nB = 8; n1 = 8; cap = 16; diag = False; sched = 'a'; ldnt = ' nt'; stf = ' sc1'; wsoff = 0

def srd(a, r, size):
    a(f's_mov_b32 s{r+2}, {size}')
    a(f's_mov_b32 s{r+3}, 0x20000')

def stamp(a, cfg, k, vs):
    if not cfg.diag: return
    a('s_memrealtime s[100:101]')
    a.wait_lg0()
    a(f'v_writelane_b32 v{vs}, s100, {k}')

def stamp_out(a, cfg, kern, vs, vt, wsrd, swg, dbg=0):
    if not cfg.diag: return
    if cfg.diag == 2:
        a(f'v_readlane_b32 s100, v{vs}, 0')
        a('s_not_b32 s100, s100')
        a(f'v_writelane_b32 v{vs}, s100, {6 if kern == 0 else 2}')
        a('s_mov_b64 exec, -1')
        a(f'v_lshlrev_b32 v0, 2, v0')
        a('v_cmpx_gt_u32 vcc, 32, v0')
        l = a.label(f'dg{kern}')
        a(f's_cbranch_execz {l}')
        a(f'global_atomic_umax v0, v{vs}, s[{dbg}:{dbg+1}] offset:{512 if kern == 0 else 32}')
        a(f'{l}:')
        return
    a('s_mov_b64 exec, 0xffff')
    a(f'v_lshrrev_b32 v{vt}, 6, v0')
    a(f'v_lshlrev_b32 v{vt}, 6, v{vt}')
    a(f'v_and_b32 v0, 63, v0')
    a(f'v_lshl_add_u32 v{vt}, v0, 2, v{vt}')
    a(f's_lshl_b32 s100, s{swg}, 10')
    a(f's_add_u32 s100, s100, {DIAGB + kern * 262144}')
    a(f'buffer_store_dword v{vs}, v{vt}, s[{wsrd}:{wsrd+3}], s100 offen')

def k1(cfg):
    a = Asm()
    OUT, IN, ANG, BIN, RK, BS, REC, VS = 4, 14, 24, 30, 40, 50, 60, 100
    CNT, BASE, RECB = 0, 1024, 2048
    a('s_cmp_ge_u32 s2, 256')
    a('s_cbranch_scc1 k1_end')
    a('s_load_dwordx2 s[16:17], s[0:1], 16')
    a('s_load_dwordx2 s[20:21], s[0:1], 8')
    a('s_load_dwordx2 s[24:25], s[0:1], 32')
    a('s_load_dwordx2 s[28:29], s[0:1], 0')
    a('s_load_dwordx2 s[32:33], s[0:1], 104')
    if cfg.diag == 2:
        a('s_load_dwordx2 s[60:61], s[0:1], 96')
        a(f'v_mov_b32 v{VS}, 0')
    stamp(a, cfg, 0, VS)
    srd(a, 16, 10240000); srd(a, 20, 10240000); srd(a, 24, 5120000); srd(a, 28, 1280000); srd(a, 32, WSZ)
    a('v_lshlrev_b32 v1, 3, v0')
    a('v_lshlrev_b32 v2, 2, v0')
    a('s_mul_i32 s40, s2, 40000')
    for c in range(1, 5): a(f's_add_u32 s{40+c}, s40, {8000*c}')
    for c in range(5): a(f's_lshr_b32 s{45+c}, s{40+c}, 1')
    a('v_mov_b32 v3, 0')
    a('v_cmp_gt_u32 vcc, 256, v0')
    a('s_and_saveexec_b64 s[4:5], vcc')
    a.lds(f'ds_write_b32 v2, v3 offset:{CNT}')
    a('s_mov_b64 exec, s[4:5]')
    a('v_mov_b32 v3, 1')
    a('v_cmp_gt_u32 vcc, 1000, v0')
    a('s_and_b64 exec, exec, vcc')
    a('s_mov_b64 s[6:7], exec')
    a(f's_mul_i32 s50, s2, {STRIDE}')
    if cfg.wsoff: a(f's_add_u32 s50, s50, {cfg.wsoff}')
    for i in range(1, 8): a(f's_add_u32 s{50+i}, s50, {16000*i}')
    a('s_mov_b32 s8, 6871948')
    a('s_mov_b32 s9, -625')
    a('s_mov_b32 s10, 0x3ff')
    a(f's_mov_b32 s11, {RECB}')
    a('s_lshl_b32 s12, s2, 10')
    a(f's_add_u32 s12, s12, {OFFB + cfg.wsoff}')
    a.wait_lg0()
    if cfg.nB > 0:
        a(f's_cmp_lt_u32 s2, {16*cfg.nB}')
        a('s_cbranch_scc1 k1_B')

    def ld_out(c): a.vmem(f'buffer_load_dwordx2 v[{OUT+2*c}:{OUT+2*c+1}], v1, s[16:19], s{40+c} offen{cfg.ldnt}', f'o{c}')
    def ld_in(c): a.vmem(f'buffer_load_dwordx2 v[{IN+2*c}:{IN+2*c+1}], v1, s[20:23], s{40+c} offen{cfg.ldnt}', f'i{c}')
    def ld_ang(c): a.vmem(f'buffer_load_dword v{ANG+c}, v2, s[24:27], s{45+c} offen{cfg.ldnt}', f'a{c}')
    def rank(c):
        a.wait(vm=[f'o{c}'])
        for i in (2*c, 2*c+1):
            a(f'v_mul_hi_u32_u24 v{BIN+i}, s8, v{OUT+i}')
            a(f'v_mad_i32_i24 v{OUT+i}, v{BIN+i}, s9, v{OUT+i}')
            a(f'v_lshlrev_b32 v{BIN+i}, 2, v{BIN+i}')
            a.lds(f'ds_add_rtn_u32 v{RK+i}, v{BIN+i}, v3 offset:{CNT}', f'r{i}')
    def scan(RS, tag):
        a.wait_lg0()
        stamp(a, cfg, 1, VS)
        a('s_barrier')
        a('v_readfirstlane_b32 s3, v0')
        a('s_cmp_ge_u32 s3, 64')
        a(f's_cbranch_scc1 k1_noscan{tag}')
        T = 80
        a(f'v_lshlrev_b32 v{T+12}, 4, v0')
        a(f'ds_read_b128 v[{T}:{T+3}], v{T+12} offset:{CNT}')
        a('s_waitcnt lgkmcnt(0)')
        a(f'v_add_u32 v{T+5}, v{T}, v{T+1}')
        a(f'v_add_u32 v{T+6}, v{T+5}, v{T+2}')
        a(f'v_add_u32 v{T+7}, v{T+6}, v{T+3}')
        a(f'v_mov_b32 v{T+4}, v{T+7}')
        for d in ('row_shr:1 row_mask:0xf', 'row_shr:2 row_mask:0xf', 'row_shr:4 row_mask:0xf', 'row_shr:8 row_mask:0xf',
                  'row_bcast:15 row_mask:0xa', 'row_bcast:31 row_mask:0xc'):
            a(f'v_add_u32_dpp v{T+4}, v{T+4}, v{T+4} {d} bank_mask:0xf')
        a(f'v_sub_u32 v{T+4}, v{T+4}, v{T+7}')
        a(f'v_add_u32 v{T+7}, v{T+4}, v{T+6}')
        a(f'v_add_u32 v{T+6}, v{T+4}, v{T+5}')
        a(f'v_add_u32 v{T+5}, v{T+4}, v{T}')
        for i in range(4): a(f'v_mad_u32_u24 v{T+8+i}, v{T+4+i}, {RS}, s11')
        a(f'ds_write_b128 v{T+12}, v[{T+8}:{T+11}] offset:{BASE}')
        for i in range(4): a(f'v_lshl_or_b32 v{T+i}, v{T+i}, 16, v{T+4+i}')
        a(f'buffer_store_dwordx4 v[{T}:{T+3}], v{T+12}, s[32:35], s12 offen{cfg.stf}')
        a('s_waitcnt lgkmcnt(0)')
        a(f'k1_noscan{tag}:')
        a('s_barrier')
        for i in range(10): a.lds(f'ds_read_b32 v{BS+i}, v{BIN+i} offset:{BASE}', f'b{i}')
        for i in range(10):
            a.wait(lg=[f'b{i}'])
            a(f'v_mad_u32_u24 v{RK+i}, v{RK+i}, {RS}, v{BS+i}')
        stamp(a, cfg, 2, VS)
    def cosd1(c, dst):
        a.wait(vm=[f'a{c}'])
        a(f'v_lshlrev_b32 v{BS}, 16, v{ANG+c}')
        a(f'v_and_b32 v{BS+1}, 0xffff0000, v{ANG+c}')
        for h in range(2): a(f'v_mul_f32 v{BS+h}, 0.15915494, v{BS+h}')
        for h in range(2): a(f'v_fract_f32 v{BS+h}, v{BS+h}')
        for h in range(2): a(f'v_cos_f32 v{BS+h}, v{BS+h}')
        for h in range(2): a(f'v_bfi_b32 v{dst(2*c+h)}, s10, v{OUT+2*c+h}, v{BS+h}')
    def copyout(n16, tag):
        a.wait_lg0()
        stamp(a, cfg, 3, VS)
        a('s_barrier')
        a('v_lshlrev_b32 v1, 4, v0')
        a(f'v_add_u32 v2, 64000, v1')
        full, rem = divmod(n16, 1000)
        n = full + (1 if rem else 0)
        for i in range(n):
            b, o = (1, RECB + 16000*i) if i < 3 else (2, RECB + 16000*i - 64000)
            if o < 0: b, o = 1, RECB + 16000*i
            a.lds(f'ds_read_b128 v[{4+4*i}:{7+4*i}], v{b} offset:{o}', f'c{i}')
        for i in range(n):
            if i == full:
                a(f'v_cmp_gt_u32 vcc, {rem}, v0')
                a('s_and_b64 exec, exec, vcc')
                a(f's_cbranch_execz k1_skip{tag}')
            a.wait(lg=[f'c{i}'])
            a.vmem(f'buffer_store_dwordx4 v[{4+4*i}:{7+4*i}], v1, s[32:35], s{50+i} offen{cfg.stf}', f's{i}')
        a(f'k1_skip{tag}:')
        if cfg.diag:
            stamp(a, cfg, 4, VS)
            a.wait_vm0()
            stamp(a, cfg, 5, VS)
            stamp_out(a, cfg, 0, VS, 1, 32, 2, 60)
        a('s_endpgm')
        a.vm = []; a.lg = []

    if cfg.nB < 16:
        for c in range(5): ld_out(c)
        for c in range(5): ld_in(c); ld_ang(c)
        a('s_barrier')
        for c in range(5): rank(c)
        scan(8, 'A')
        for c in range(5):
            cosd1(c, lambda i: REC + 2*i)
            for i in (2*c, 2*c+1):
                a(f'v_lshlrev_b32 v{REC+2*i+1}, 3, v{IN+i}')
                a.lds(f'ds_write_b64 v{RK+i}, v[{REC+2*i}:{REC+2*i+1}]')
        copyout(5000, 'A')
    if cfg.nB > 0:
        a('k1_B:')
        def gath(c):
            a.wait(vm=[f'i{c}'])
            for i in (2*c, 2*c+1):
                a(f'v_lshlrev_b32 v{IN+i}, 3, v{IN+i}')
                a.vmem(f'buffer_load_dwordx2 v[{REC+2*i}:{REC+2*i+1}], v{IN+i}, s[28:31], 0 offen', f'g{i}')
        for c in range(5): ld_in(c); ld_out(c)
        for c in range(5): ld_ang(c)
        a('s_barrier')
        if cfg.k1b == 0:
            for c in range(5): gath(c); rank(c)
            scan(12, 'B')
        else:
            gath(0); gath(1)
            for c in range(5): rank(c)
            scan(12, 'B')
            for c in range(2, 5): gath(c)
        for c in range(5):
            cosd1(c, lambda i: OUT + i)
            for i in (2*c, 2*c+1): a.lds(f'ds_write_b32 v{RK+i}, v{OUT+i} offset:8')
        for i in range(10):
            a.wait(vm=[f'g{i}'])
            a.lds(f'ds_write2_b32 v{RK+i}, v{REC+2*i}, v{REC+2*i+1} offset0:0 offset1:1')
        copyout(7500, 'B')
    a('k1_end:')
    a('s_endpgm')
    return a.text(), 104 if cfg.diag else 96, RECB + 120000

def k2(cfg):
    a = Asm()
    CAP = cfg.cap
    CNT = [0, 2560]; FB = 5120; C32 = 25120; M64 = C32 + CAP*2500
    LDS = M64 + CAP*5000
    assert M64 <= 65535 and LDS <= 163840
    R = lambda j: 8 + 4*j
    P, A_, G_, MO, DI = 72, 80, 88, 92, 94
    VSO, VCN, E4, E8, E8b, DF = 95, 96, 97, 98, 99, 100
    T = 102
    VS = 120
    isB = lambda j: j < cfg.nB
    rnd = lambda j: 0 if j < cfg.n1 else 1
    a('s_cmp_ge_u32 s2, 256')
    a('s_cbranch_scc1 k2_end')
    a('s_load_dwordx2 s[4:5], s[0:1], 104')
    a('s_load_dwordx2 s[8:9], s[0:1], 0')
    a('s_load_dwordx2 s[40:41], s[0:1], 24')
    a('s_load_dwordx4 s[36:39], s[0:1], 56')
    a('s_load_dwordx2 s[12:13], s[0:1], 88')
    a('s_load_dwordx4 s[16:19], s[0:1], 72')
    if cfg.diag:
        a('v_writelane_b32 v121, s2, 0')
        a('v_writelane_b32 v121, s0, 1')
        a('v_writelane_b32 v121, s1, 2')
        a(f'v_mov_b32 v{VS}, 0')
    stamp(a, cfg, 0, VS)
    a('v_lshrrev_b32 v4, 6, v0')
    a('v_and_b32 v5, 63, v0')
    a('s_and_b32 s3, s2, 7')
    a('s_lshl_b32 s3, s3, 5')
    a('s_lshr_b32 s2, s2, 3')
    a('s_add_u32 s2, s2, s3')
    a('v_readfirstlane_b32 s3, v4')
    srd(a, 4, WSZ); srd(a, 8, 1280000); srd(a, 12, 1280000)
    a('v_lshlrev_b32 v6, 14, v5')
    a('s_lshl_b32 s42, s3, 8')
    a('s_add_u32 s42, s42, s2')
    a('s_lshl_b32 s42, s42, 2')
    a(f's_add_u32 s42, s42, {OFFB + cfg.wsoff}')
    a('s_mov_b64 exec, 0xffff')
    a.wait_lg0()
    a.vmem(f'buffer_load_dword v{VCN}, v6, s[4:7], s42 offen', 'off')
    a('s_mov_b64 exec, -1')
    a('v_lshlrev_b32 v1, 3, v5')
    a('v_mul_u32_u24 v2, 12, v5')
    a('v_mov_b32 v3, 2500')
    a('v_lshl_add_u32 v6, v5, 4, v4')
    a(f'v_mul_u32_u24 v6, {STRIDE}, v6')
    if cfg.wsoff: a(f'v_add_u32 v6, {cfg.wsoff}, v6')
    a(f'v_cmp_gt_u32 vcc, {cfg.nB}, v5')
    a('v_cndmask_b32 v7, 8, 12, vcc')
    a('s_mul_i32 s2, s2, 5000')
    a('s_cmp_ge_u32 s3, 10')
    a('s_cbranch_scc1 k2_N')
    save = (list(a.vm), list(a.lg))

    def fbadd(r):
        a(f'v_and_b32 v{T}, 0x3ff, v{r+2}')
        a(f'v_lshlrev_b32 v{T}, 5, v{T}')
        a(f'v_fma_f32 v{T+1}, v{r+2}, v{r+2}, -0.5')
        for k in range(4):
            if k & 1: a(f'v_and_b32 v{T+2}, 0xffff0000, v{r+k//2}')
            else: a(f'v_lshlrev_b32 v{T+2}, 16, v{r+k//2}')
            a(f'v_mul_f32 v{T+3}, v{r+2}, v{T+2}')
            a(f'ds_add_f32 v{T}, v{T+3} offset:{FB+4*k}')
            a(f'v_mul_f32 v{T+4}, v{T+1}, v{T+2}')
            a(f'ds_add_f32 v{T}, v{T+4} offset:{FB+16+4*k}')
    def ex(j): a(f's_bfm_b64 exec, s{20+j}, 0')
    def L(j):
        ex(j)
        if isB(j): a.vmem(f'buffer_load_dwordx3 v[{R(j)}:{R(j)+2}], v2, s[4:7], s{36+j} offen', f'L{j}')
        else: a.vmem(f'buffer_load_dwordx2 v[{R(j)+2}:{R(j)+3}], v1, s[4:7], s{36+j} offen', f'L{j}')
    def G(j):
        ex(j)
        a.wait(vm=[f'L{j}'])
        if not isB(j): a.vmem(f'buffer_load_dwordx2 v[{R(j)}:{R(j)+1}], v{R(j)+3}, s[8:11], 0 offen', f'G{j}')
        a(f'v_and_b32 v{T}, 0x3ff, v{R(j)+2}')
        a(f'v_lshlrev_b32 v{T}, 2, v{T}')
        a.lds(f'ds_add_rtn_u32 v{R(j)+3}, v{T}, v3 offset:{CNT[rnd(j)]}', f'r{j}')
    def W(j, cls):
        ex(j)
        a.wait(vm=[f'G{j}'], lg=[f'r{j}'])
        a(f'v_cmp_le_u32 vcc, {CAP*2500}, v{R(j)+3}')
        a(f'v_lshlrev_b32 v{T+6}, 1, v{R(j)+3}')
        a(f's_cbranch_vccnz k2_ov{cls}{j}')
        a(f'k2_ovr{cls}{j}:')
        a.lds(f'ds_write_b32 v{R(j)+3}, v{R(j)+2} offset:{C32}')
        a.lds(f'ds_write_b64 v{T+6}, v[{R(j)}:{R(j)+1}] offset:{M64}')
        with a.ool():
            a(f'k2_ov{cls}{j}:')
            a('s_and_saveexec_b64 s[0:1], vcc')
            fbadd(R(j))
            a('s_andn2_b64 exec, s[0:1], vcc')
            a(f's_branch k2_ovr{cls}{j}')
    def decode(cls, order):
        a.wait(vm=['off'])
        stamp(a, cfg, 1, VS)
        a('s_mov_b64 exec, 0xffff')
        a(f'v_and_b32 v{VSO}, 0xffff, v{VCN}')
        a(f'v_lshrrev_b32 v{VCN}, 16, v{VCN}')
        a(f'v_mad_u32_u24 v{VSO}, v{VSO}, v7, v6')
        a(f'v_min_u32 v{T}, 63, v{VCN}')
        a(f'v_cmp_lt_u32 vcc, 63, v{VCN}')
        D = 3
        for n in range(16 + D):
            if n < 16:
                j = order[n]
                a(f'v_readlane_b32 s{36+j}, v{VSO}, {j}')
                a(f'v_readlane_b32 s{20+j}, v{T}, {j}')
            if n >= D: L(order[n-D])
        a(f's_cbranch_vccnz k2_left{cls}')
        a(f'k2_leftr{cls}:')
        with a.ool():
            U = T + 8
            a(f'k2_left{cls}:')
            a('s_mov_b64 s[36:37], vcc')
            a(f'k2_lj{cls}:')
            a('s_ff1_i32_b64 s38, s[36:37]')
            a('s_bitset0_b64 s[36:37], s38')
            a(f'v_readlane_b32 s39, v{VSO}, s38')
            a(f'v_readlane_b32 s40, v{VCN}, s38')
            a(f'v_readlane_b32 s41, v7, s38')
            a('s_nop 4')
            a('s_mul_i32 s41, s41, 63')
            a('s_sub_u32 s40, s40, 63')
            a(f'k2_lc{cls}:')
            a('s_add_u32 s39, s39, s41')
            a('s_min_u32 s42, s40, 63')
            a('s_bfm_b64 exec, s42, 0')
            a(f's_cmp_lt_u32 s38, {cfg.nB}')
            a(f's_cbranch_scc1 k2_lb{cls}')
            a(f'buffer_load_dwordx2 v[{U+2}:{U+3}], v1, s[4:7], s39 offen')
            a('s_waitcnt vmcnt(0)')
            a(f'buffer_load_dwordx2 v[{U}:{U+1}], v{U+3}, s[8:11], 0 offen')
            a(f's_branch k2_ld{cls}')
            a(f'k2_lb{cls}:')
            a(f'buffer_load_dwordx3 v[{U}:{U+2}], v2, s[4:7], s39 offen')
            a(f'k2_ld{cls}:')
            a('s_waitcnt vmcnt(0)')
            fbadd(U)
            a('s_sub_u32 s40, s40, s42')
            a('s_cmp_lg_u32 s40, 0')
            a(f's_cbranch_scc1 k2_lc{cls}')
            a('s_cmp_lg_u64 s[36:37], 0')
            a(f's_cbranch_scc1 k2_lj{cls}')
            a(f's_branch k2_leftr{cls}')
    def bar():
        a.wait_lg0(); a('s_barrier')
    def exR(): a('s_mov_b64 exec, s[98:99]') if False else None
    def edge_exec():
        a('s_mov_b64 exec, -1')
        a('v_cmpx_gt_u32 vcc, 625, v0')
    def rnd2(x, y):
        a(f'v_cvt_pk_bf16_f32 v{y}, v{x}, v{y}')
        a(f'v_lshlrev_b32 v{x}, 16, v{y}')
        a(f'v_and_b32 v{y}, 0xffff0000, v{y}')
    bc = lambda h: f'op_sel:[{h},0,0] op_sel_hi:[{h},1,1]'
    bcm = lambda h: f'op_sel:[{h},0] op_sel_hi:[{h},1]'
    def unpack(dst, src):
        a(f's_lshl_b32 s{dst}, s{src}, 16')
        a(f's_and_b32 s{dst+1}, s{src}, 0xffff0000')
    def PRE(parts=None):
        edge_exec()
        a.wait(vm=['dist'])
        a.wait_lg0()
        a(f'v_lshlrev_b32 v{DI}, 16, v{DI}')
        tp = [0]
        for r0 in range(0, 8, 2):
            x, y = T + 8, T + 9
            for h, v in enumerate((x, y)): a(f'v_subrev_f32 v{v}, {hex(CENTERS[r0+h])}, v{DI}')
            rnd2(x, y)
            a(f'v_pk_mul_f32 v[{x}:{y}], v[{x}:{y}], v[{x}:{y}]')
            rnd2(x, y)
            for v in (x, y): a(f'v_mul_f32 v{v}, 0xc1200000, v{v}')
            rnd2(x, y)
            for v in (x, y): a(f'v_mul_f32 v{v}, 0x3fb8aa3b, v{v}')
            for v in (x, y): a(f'v_exp_f32 v{v}, v{v}')
            rnd2(x, y)
            for h in range(2):
                r = r0 + h
                for (dst, src) in [(A_, 52+4*r), (A_+2, 53+4*r), (A_+4, 54+4*r), (A_+6, 55+4*r), (G_, 84+2*r), (G_+2, 85+2*r)]:
                    s = 36 + 2*(tp[0] % 8); tp[0] += 1
                    unpack(s, src)
                    if r == 0: a(f'v_pk_mul_f32 v[{dst}:{dst+1}], v[{x}:{y}], s[{s}:{s+1}] {bcm(h)}')
                    else: a(f'v_pk_fma_f32 v[{dst}:{dst+1}], v[{x}:{y}], s[{s}:{s+1}], v[{dst}:{dst+1}] {bc(h)}')
        a('s_load_dwordx8 s[52:59], s[16:17], 0')
        a('s_load_dwordx8 s[60:67], s[18:19], 0')
        for d in (4, 6): a(f'v_pk_add_f32 v[{A_+d}:{A_+d+1}], v[{A_+d}:{A_+d+1}], v[{A_+d}:{A_+d+1}]')
        rnd2(G_, G_+1); rnd2(G_+2, G_+3)
    def RO(rd, bufs, inter=()):
        inter = list(inter)
        edge_exec()
        a.lds(f'ds_read_b32 v{DF}, v{E4} offset:{CNT[rd]}', 'cnt')
        nb = len(bufs)
        def rdslot(s):
            b = bufs[s % nb]
            a.lds(f'ds_read_b32 v{b+2}, v{E4} offset:{C32+2500*s}', f'c{s}')
            if s <= 13: a.lds(f'ds_read_b64 v[{b}:{b+1}], v{E8} offset:{5000*s}', f'm{s}')
            else: a.lds(f'ds_read_b64 v[{b}:{b+1}], v{E8b} offset:{5000*(s-14)}', f'm{s}')
        D = min(nb - 1, 6)
        for s in range(D): rdslot(s)
        a.wait(lg=['cnt'])
        a(f'v_sub_u32 v{DF}, v{DF}, v{E4}')
        for s in range(CAP):
            b = bufs[s % nb]
            a(f'v_cmpx_lt_u32 vcc, {2500*s}, v{DF}')
            if s >= CAP - 6: a(f's_cbranch_execz k2_rodone{rd}')
            if s + D < CAP: rdslot(s + D)
            a.wait(lg=[f'm{s}'])
            a(f'v_fma_f32 v{b+3}, v{b+2}, v{b+2}, -0.5')
            a(f'v_lshlrev_b32 v{T}, 16, v{b}')
            a(f'v_and_b32 v{T+1}, 0xffff0000, v{b}')
            a(f'v_lshlrev_b32 v{T+2}, 16, v{b+1}')
            a(f'v_and_b32 v{T+3}, 0xffff0000, v{b+1}')
            for l in range(2):
                for kk in range(2):
                    p = P + 4*l + 2*kk
                    a(f'v_pk_fma_f32 v[{p}:{p+1}], v[{b+2}:{b+3}], v[{T+2*kk}:{T+2*kk+1}], v[{p}:{p+1}] {bc(l)}')
        a(f'k2_rodone{rd}:')
        a.wait_lg0()
    def FIN():
        edge_exec()
        a(f'v_lshlrev_b32 v{E8}, 5, v0')
        a.lds(f'ds_read_b128 v[8:11], v{E8} offset:{FB}', 'f0')
        a.lds(f'ds_read_b128 v[12:15], v{E8} offset:{FB+16}', 'f1')
        for i in range(8): unpack(36 + 2*i, 52 + i)
        for i in range(8): unpack(68 + 2*i, 60 + i)
        a.wait_lg0()
        for i in range(4): a(f'v_pk_add_f32 v[{P+2*i}:{P+2*i+1}], v[{P+2*i}:{P+2*i+1}], v[{8+2*i}:{9+2*i}]')
        S = 16
        for k in range(4):
            for l in range(2):
                for dd in range(2):
                    src = P + 4*l + (k & 2); s = 36 + 4*k + 2*dd; d = S + 4*l + 2*dd
                    if k == 0: a(f'v_pk_mul_f32 v[{d}:{d+1}], v[{src}:{src+1}], s[{s}:{s+1}] {bcm(k&1)}')
                    else: a(f'v_pk_fma_f32 v[{d}:{d+1}], v[{src}:{src+1}], s[{s}:{s+1}], v[{d}:{d+1}] {bc(k&1)}')
        for dd in (0, 2): a(f'v_pk_mul_f32 v[{S+dd}:{S+dd+1}], v[{S+dd}:{S+dd+1}], v[{A_+dd}:{A_+dd+1}]')
        for dd in (0, 2): a(f'v_pk_fma_f32 v[{S+dd}:{S+dd+1}], v[{S+4+dd}:{S+5+dd}], v[{A_+4+dd}:{A_+5+dd}], v[{S+dd}:{S+dd+1}]')
        rnd2(S, S+1); rnd2(S+2, S+3)
        U = 24
        for k in range(4):
            for dd in range(2):
                src = S + (k & 2); s = 68 + 4*k + 2*dd; d = U + 2*dd
                if k == 0: a(f'v_pk_mul_f32 v[{d}:{d+1}], v[{src}:{src+1}], s[{s}:{s+1}] {bcm(k&1)}')
                else: a(f'v_pk_fma_f32 v[{d}:{d+1}], v[{src}:{src+1}], s[{s}:{s+1}], v[{d}:{d+1}] {bc(k&1)}')
        rnd2(U, U+1); rnd2(U+2, U+3)
        for dd in (0, 2): a(f'v_pk_mul_f32 v[{U+dd}:{U+dd+1}], v[{U+dd}:{U+dd+1}], v[{G_+dd}:{G_+dd+1}]')
        rnd2(U, U+1); rnd2(U+2, U+3)
        a.wait(vm=['mo'])
        a(f'v_lshlrev_b32 v{S}, 16, v{MO}')
        a(f'v_and_b32 v{S+1}, 0xffff0000, v{MO}')
        a(f'v_lshlrev_b32 v{S+2}, 16, v{MO+1}')
        a(f'v_and_b32 v{S+3}, 0xffff0000, v{MO+1}')
        for dd in (0, 2): a(f'v_pk_add_f32 v[{U+dd}:{U+dd+1}], v[{U+dd}:{U+dd+1}], v[{S+dd}:{S+dd+1}]')
        a(f'v_cvt_pk_bf16_f32 v{U}, v{U}, v{U+1}')
        a(f'v_cvt_pk_bf16_f32 v{U+1}, v{U+2}, v{U+3}')
        a(f'v_lshlrev_b32 v{E8}, 3, v0')
        a.vmem(f'buffer_store_dwordx2 v[{U}:{U+1}], v{E8}, s[12:15], s2 offen', 'st')

    r1 = [j for j in range(16) if rnd(j) == 0]; r2 = [j for j in range(16) if rnd(j) == 1]
    As = [j for j in range(16) if not isB(j)]; Bs = [j for j in range(16) if isB(j)]
    def body(cls):
        isR = cls == 'R'
        if isR:
            a('s_load_dwordx16 s[52:67], s[38:39], 0')
            a('s_load_dwordx16 s[68:83], s[38:39], 64')
            a('s_load_dwordx16 s[84:99], s[36:37], 0')
            a('v_cmpx_gt_u32 vcc, 625, v0')
            a(f'v_lshlrev_b32 v{E4}, 2, v0')
            a(f'v_lshlrev_b32 v{E8}, 3, v0')
            a('s_lshr_b32 s42, s2, 2')
            a(f'v_lshl_add_u32 v{T}, v0, 1, s42')
            a.vmem(f'global_load_ushort v{DI}, v{T}, s[40:41]', 'dist')
            a.vmem(f'buffer_load_dwordx2 v[{MO}:{MO+1}], v{E8}, s[8:11], s2 offen', 'mo')
            for i in range(8): a(f'v_mov_b32 v{P+i}, 0')
            a(f'ds_write_b32 v{E4}, v{E4} offset:{CNT[0]}')
            a(f'ds_write_b32 v{E4}, v{E4} offset:{CNT[1]}')
            a(f'v_lshlrev_b32 v{T}, 5, v0')
            a(f'ds_write_b128 v{T}, v[{P}:{P+3}] offset:{FB}')
            a(f'ds_write_b128 v{T}, v[{P}:{P+3}] offset:{FB+16}')
            a(f'v_add_u32 v{E8}, {M64}, v{E8}')
            a(f'v_add_u32 v{E8b}, 70000, v{E8}')
        bar()
        order = As + Bs
        decode(cls, order)
        stamp(a, cfg, 2, VS)
        A1 = [j for j in r1 if not isB(j)]; A2 = [j for j in r2 if not isB(j)]
        B1 = [j for j in r1 if isB(j)]; B2 = [j for j in r2 if isB(j)]
        ops = []
        if cfg.sched == 'a':
            ops += [('G', j) for j in A1]
            g2 = [('G', j) for j in A2]
            npre = cfg.gpre
            ops += g2[:npre]; g2 = g2[npre:]
            if isR and cfg.prepos == 0: ops.append(('PRE',))
            ops += [('G', j) for j in B1 + B2]
            w1 = [('W', j) for j in B1 + A1]
            keep = cfg.gpost
            mid = g2[:len(g2)-keep] if keep else g2
            post = g2[len(g2)-keep:] if keep else []
            n = 0
            for i, w in enumerate(w1):
                ops.append(w)
                while n < len(mid) and (n + 1) * len(w1) <= (i + 1) * len(mid): ops.append(mid[n]); n += 1
            ops += mid[n:]
            ops.append(('BAR',)); ops.append(('ST', 3))
            if not isR: ops += post
            if isR:
                ops.append(('RO', 0)); ops += post
            ops.append(('BAR',)); ops.append(('ST', 4))
            if isR and cfg.prepos == 1: ops.append(('PRE',))
            ops += [('W', j) for j in B2 + A2]
            ops.append(('BAR',)); ops.append(('ST', 5))
            if isR: ops += [('RO', 1), ('ST', 6), ('FIN',)]
        for o in ops:
            if o[0] == 'G': G(o[1])
            elif o[0] == 'W': W(o[1], cls)
            elif o[0] == 'PRE': PRE()
            elif o[0] == 'BAR': bar()
            elif o[0] == 'ST': stamp(a, cfg, o[1], VS)
            elif o[0] == 'RO': RO(o[1], [R(j) for j in (r1 if o[1] == 0 else range(8))][:8])
            elif o[0] == 'FIN': FIN()
        if cfg.diag:
            a.wait_vm0()
            stamp(a, cfg, 7, VS)
            if cfg.diag == 2:
                a('v_readlane_b32 s0, v121, 1')
                a('v_readlane_b32 s1, v121, 2')
                a('s_nop 4')
                a('s_load_dwordx2 s[98:99], s[0:1], 96')
                a('s_waitcnt lgkmcnt(0)')
            a('v_readlane_b32 s2, v121, 0')
            stamp_out(a, cfg, 1, VS, 1, 4, 2, 98)
        a('s_endpgm')
    body('R')
    a('k2_N:')
    a.vm, a.lg = save
    body('N')
    a('k2_end:')
    a('s_endpgm')
    return a.text(), 124 if cfg.diag else 120, LDS

def desc(name, vg):
    return f'''.amdhsa_kernel {name}
  .amdhsa_next_free_vgpr {vg}
  .amdhsa_next_free_sgpr 102
  .amdhsa_accum_offset {(vg+3)//4*4}
  .amdhsa_group_segment_fixed_size 0
  .amdhsa_kernarg_size 112
  .amdhsa_user_sgpr_count 2
  .amdhsa_user_sgpr_kernarg_segment_ptr 1
  .amdhsa_system_sgpr_workgroup_id_x 1
.end_amdhsa_kernel
'''

def build(cfg):
    t1, v1, l1 = k1(cfg); t2, v2, l2 = k2(cfg)
    n1, n2 = 'gemnet_bin_kernel', NAME + '_kernel'
    s = HDR
    ks = [(n1, t1, v1, l1), (n2, t2, v2, l2)]
    em = '; @launch kernel=empty_kernel grid=(1,1,1) block=(64,1,1) lds=0\n'
    s += em * cfg.epre
    for r in range(cfg.rep):
        s += f'; @launch kernel={n1} grid=(256,1,1) block=(1024,1,1) lds={l1}\n'
        s += f'; @launch kernel={n2} grid=(256,1,1) block=(1024,1,1) lds={l2}\n' * cfg.rep2
    s += em * cfg.epost
    etext = '    s_endpgm\n'
    if cfg.probe:
        etext = f'''    s_cmp_ge_u32 s2, 1
    s_cbranch_scc1 pr_end
    s_load_dwordx2 s[4:5], s[0:1], 104
    s_waitcnt lgkmcnt(0)
    s_add_u32 s4, s4, {DIAGB + cfg.probek * 262144}
    s_addc_u32 s5, s5, 0
    s_load_dword s6, s[4:5], {cfg.probes * 4}
    s_mov_b32 s7, 20000
pr_l:
    s_memrealtime s[8:9]
    s_waitcnt lgkmcnt(0)
    s_sub_u32 s8, s8, s6
    s_sub_u32 s7, s7, 1
    s_cmp_eq_u32 s7, 0
    s_cbranch_scc1 pr_end
    s_cmp_lt_u32 s8, {cfg.probe}
    s_cbranch_scc1 pr_l
pr_end:
    s_endpgm
'''
    if cfg.epre or cfg.epost: ks.append(('empty_kernel', etext, 8, 0))
    s += '.amdgcn_target "amdgcn-amd-amdhsa--gfx950"\n.text\n'
    for n, t, v, l in ks:
        s += f'.globl {n}\n.p2align 8\n.type {n},@function\n{n}:\n{t}'
    s += '.section .rodata,"a"\n'
    for n, t, v, l in ks: s += '.p2align 6\n' + desc(n, v)
    return s

if __name__ == '__main__':
    ap = argparse.ArgumentParser()
    ap.add_argument('-o', default='cdna_kernels/' + NAME + '.s')
    ap.add_argument('kv', nargs='*')
    x = ap.parse_args()
    cfg = Cfg(); cfg.probe = 0; cfg.probek = 0; cfg.probes = 0; cfg.epre = 0; cfg.epost = 0; cfg.rep = 1; cfg.rep2 = 1; cfg.k1b = 0; cfg.gpre = 2; cfg.gpost = 0; cfg.prepos = 1
    for kv in x.kv:
        k, v = kv.split('=')
        try: v = int(v, 0)
        except ValueError: v = v.replace('_', ' ')
        setattr(cfg, k, v)
    open(x.o, 'w').write(build(cfg))
```

```python
import sys, argparse
from asmlib import Asm

NAME = 'standalone__molecular_angular_gemnet__graph'
HDR = open('cdna_kernels/' + NAME + '.s.ref').read().split('; Override launch')[0]

STRIDE = 120064
OFFB = 256 * STRIDE
DIAGB = 64 << 20
WSZ = 0x10000000
CENTERS = [0x00000000, 0x3e120000, 0x3e920000, 0x3edb0000, 0x3f120000, 0x3f370000, 0x3f5b0000, 0x3f800000]

class Cfg:
    nB = 8; n1 = 8; cap = 16; diag = False; sched = 'a'; ldnt = ' nt'; stf = ' sc1'; wsoff = 0

def expand(sched):
    import re
    out = []
    for t in sched.split():
        parts = t.split(',')
        seqs = []
        for p in parts:
            m = re.fullmatch(r'([A-Z]+)(?:(\d+)(?:-(\d+))?)?', p)
            k, lo, hi = m.groups()
            seqs.append((k, None if lo is None else list(range(int(lo), int(hi or lo) + 1))))
        last = seqs[-1][1]
        if last is None: out.append((seqs[0][0], None)); continue
        n = max(len(q or last) for _, q in seqs)
        for i in range(n):
            for k, q in seqs:
                q = q or last
                if i < len(q): out.append((k, q[i]))
    return out

def srd(a, r, size):
    a(f's_mov_b32 s{r+2}, {size}')
    a(f's_mov_b32 s{r+3}, 0x20000')

def stamp(a, cfg, k, vs, clk=False):
    if not cfg.diag: return
    a('s_memrealtime s[100:101]')
    a.wait_lg0()
    a(f'v_writelane_b32 v{vs}, s100, {k}')
    if k == 0 or clk:
        a('s_memtime s[100:101]')
        a.wait_lg0()
        a(f'v_writelane_b32 v{vs}, s100, {14 if k == 0 else 15}')

def stamp_out(a, cfg, kern, vs, vt, wsrd, swg, dbg=0):
    if not cfg.diag: return
    if cfg.diag == 2:
        a(f'v_readlane_b32 s100, v{vs}, 0')
        a('s_not_b32 s100, s100')
        a(f'v_writelane_b32 v{vs}, s100, {6 if kern == 0 else 2}')
        a('s_mov_b64 exec, -1')
        a(f'v_lshlrev_b32 v0, 2, v0')
        a('v_cmpx_gt_u32 vcc, 32, v0')
        l = a.label(f'dg{kern}')
        a(f's_cbranch_execz {l}')
        a(f'global_atomic_umax v0, v{vs}, s[{dbg}:{dbg+1}] offset:{512 if kern == 0 else 32}')
        a(f'{l}:')
        return
    a('s_mov_b64 exec, 0xffff')
    a(f'v_lshrrev_b32 v{vt}, 6, v0')
    a(f'v_lshlrev_b32 v{vt}, 6, v{vt}')
    a(f'v_and_b32 v0, 63, v0')
    a(f'v_lshl_add_u32 v{vt}, v0, 2, v{vt}')
    a(f's_lshl_b32 s100, s{swg}, 10')
    a(f's_add_u32 s100, s100, {DIAGB + kern * 262144}')
    a(f'buffer_store_dword v{vs}, v{vt}, s[{wsrd}:{wsrd+3}], s100 offen')

def k1(cfg):
    a = Asm()
    OUT, IN, ANG, BIN, RK, BS, REC, VS = 4, 14, 24, 30, 40, 50, 60, 100
    CNT, BASE, RECB = 0, 1024, 2048
    a('s_cmp_ge_u32 s2, 256')
    a('s_cbranch_scc1 k1_end')
    a('s_load_dwordx2 s[16:17], s[0:1], 16')
    a('s_load_dwordx2 s[20:21], s[0:1], 8')
    a('s_load_dwordx2 s[24:25], s[0:1], 32')
    a('s_load_dwordx2 s[28:29], s[0:1], 0')
    a('s_load_dwordx2 s[32:33], s[0:1], 104')
    if cfg.diag == 2:
        a('s_load_dwordx2 s[60:61], s[0:1], 96')
        a(f'v_mov_b32 v{VS}, 0')
    stamp(a, cfg, 0, VS)
    srd(a, 16, 10240000); srd(a, 20, 10240000); srd(a, 24, 5120000); srd(a, 28, 1280000); srd(a, 32, WSZ)
    a('v_lshlrev_b32 v1, 3, v0')
    a('v_lshlrev_b32 v2, 2, v0')
    a('s_mul_i32 s40, s2, 40000')
    for c in range(1, 5): a(f's_add_u32 s{40+c}, s40, {8000*c}')
    for c in range(5): a(f's_lshr_b32 s{45+c}, s{40+c}, 1')
    a('v_mov_b32 v3, 0')
    a('v_cmp_gt_u32 vcc, 256, v0')
    a('s_and_saveexec_b64 s[4:5], vcc')
    a.lds(f'ds_write_b32 v2, v3 offset:{CNT}')
    a('s_mov_b64 exec, s[4:5]')
    a('v_mov_b32 v3, 1')
    a('v_cmp_gt_u32 vcc, 1000, v0')
    a('s_and_b64 exec, exec, vcc')
    a('s_mov_b64 s[6:7], exec')
    a(f's_mul_i32 s50, s2, {STRIDE}')
    if cfg.wsoff: a(f's_add_u32 s50, s50, {cfg.wsoff}')
    for i in range(1, 8): a(f's_add_u32 s{50+i}, s50, {16000*i}')
    a('s_mov_b32 s8, 6871948')
    a('s_mov_b32 s9, -625')
    a('s_mov_b32 s10, 0x3ff')
    a(f's_mov_b32 s11, {RECB}')
    a('s_lshl_b32 s12, s2, 10')
    a(f's_add_u32 s12, s12, {OFFB + cfg.wsoff}')
    a.wait_lg0()
    if cfg.nB > 0:
        a(f's_cmp_lt_u32 s2, {16*cfg.nB}')
        a('s_cbranch_scc1 k1_B')

    def ld_out(c): a.vmem(f'buffer_load_dwordx2 v[{OUT+2*c}:{OUT+2*c+1}], v1, s[16:19], s{40+c} offen{cfg.ldnt}', f'o{c}')
    def ld_in(c): a.vmem(f'buffer_load_dwordx2 v[{IN+2*c}:{IN+2*c+1}], v1, s[20:23], s{40+c} offen{cfg.ldnt}', f'i{c}')
    def ld_ang(c): a.vmem(f'buffer_load_dword v{ANG+c}, v2, s[24:27], s{45+c} offen{cfg.ldnt}', f'a{c}')
    def rank(c):
        a.wait(vm=[f'o{c}'])
        for i in (2*c, 2*c+1):
            a(f'v_mul_hi_u32_u24 v{BIN+i}, s8, v{OUT+i}')
            a(f'v_mad_i32_i24 v{OUT+i}, v{BIN+i}, s9, v{OUT+i}')
            a(f'v_lshlrev_b32 v{BIN+i}, 2, v{BIN+i}')
            a.lds(f'ds_add_rtn_u32 v{RK+i}, v{BIN+i}, v3 offset:{CNT}', f'r{i}')
    def scan(RS, tag):
        a.wait_lg0()
        stamp(a, cfg, 1, VS)
        a('s_barrier')
        a('v_readfirstlane_b32 s3, v0')
        a('s_cmp_ge_u32 s3, 64')
        a(f's_cbranch_scc1 k1_noscan{tag}')
        T = 80
        a(f'v_lshlrev_b32 v{T+12}, 4, v0')
        a(f'ds_read_b128 v[{T}:{T+3}], v{T+12} offset:{CNT}')
        a('s_waitcnt lgkmcnt(0)')
        a(f'v_add_u32 v{T+5}, v{T}, v{T+1}')
        a(f'v_add_u32 v{T+6}, v{T+5}, v{T+2}')
        a(f'v_add_u32 v{T+7}, v{T+6}, v{T+3}')
        a(f'v_mov_b32 v{T+4}, v{T+7}')
        for d in ('row_shr:1 row_mask:0xf', 'row_shr:2 row_mask:0xf', 'row_shr:4 row_mask:0xf', 'row_shr:8 row_mask:0xf',
                  'row_bcast:15 row_mask:0xa', 'row_bcast:31 row_mask:0xc'):
            a(f'v_add_u32_dpp v{T+4}, v{T+4}, v{T+4} {d} bank_mask:0xf')
        a(f'v_sub_u32 v{T+4}, v{T+4}, v{T+7}')
        a(f'v_add_u32 v{T+7}, v{T+4}, v{T+6}')
        a(f'v_add_u32 v{T+6}, v{T+4}, v{T+5}')
        a(f'v_add_u32 v{T+5}, v{T+4}, v{T}')
        for i in range(4): a(f'v_mad_u32_u24 v{T+8+i}, v{T+4+i}, {RS}, s11')
        a(f'ds_write_b128 v{T+12}, v[{T+8}:{T+11}] offset:{BASE}')
        for i in range(4): a(f'v_lshl_or_b32 v{T+i}, v{T+i}, 16, v{T+4+i}')
        a(f'buffer_store_dwordx4 v[{T}:{T+3}], v{T+12}, s[32:35], s12 offen{cfg.stf}')
        a('s_waitcnt lgkmcnt(0)')
        a(f'k1_noscan{tag}:')
        a('s_barrier')
        for i in range(10): a.lds(f'ds_read_b32 v{BS+i}, v{BIN+i} offset:{BASE}', f'b{i}')
        for i in range(10):
            a.wait(lg=[f'b{i}'])
            a(f'v_mad_u32_u24 v{RK+i}, v{RK+i}, {RS}, v{BS+i}')
        stamp(a, cfg, 2, VS)
    def cosd1(c, dst):
        a.wait(vm=[f'a{c}'])
        a(f'v_lshlrev_b32 v{BS}, 16, v{ANG+c}')
        a(f'v_and_b32 v{BS+1}, 0xffff0000, v{ANG+c}')
        for h in range(2): a(f'v_mul_f32 v{BS+h}, 0.15915494, v{BS+h}')
        for h in range(2): a(f'v_fract_f32 v{BS+h}, v{BS+h}')
        for h in range(2): a(f'v_cos_f32 v{BS+h}, v{BS+h}')
        for h in range(2): a(f'v_bfi_b32 v{dst(2*c+h)}, s10, v{OUT+2*c+h}, v{BS+h}')
    def copyout(n16, tag):
        a.wait_lg0()
        stamp(a, cfg, 3, VS)
        a('s_barrier')
        a('v_lshlrev_b32 v1, 4, v0')
        a(f'v_add_u32 v2, 64000, v1')
        full, rem = divmod(n16, 1000)
        n = full + (1 if rem else 0)
        for i in range(n):
            b, o = (1, RECB + 16000*i) if i < 3 else (2, RECB + 16000*i - 64000)
            if o < 0: b, o = 1, RECB + 16000*i
            a.lds(f'ds_read_b128 v[{4+4*i}:{7+4*i}], v{b} offset:{o}', f'c{i}')
        for i in range(n):
            if i == full:
                a(f'v_cmp_gt_u32 vcc, {rem}, v0')
                a('s_and_b64 exec, exec, vcc')
                a(f's_cbranch_execz k1_skip{tag}')
            a.wait(lg=[f'c{i}'])
            a.vmem(f'buffer_store_dwordx4 v[{4+4*i}:{7+4*i}], v1, s[32:35], s{50+i} offen{cfg.stf}', f's{i}')
        a(f'k1_skip{tag}:')
        if cfg.diag:
            stamp(a, cfg, 4, VS)
            a.wait_vm0()
            stamp(a, cfg, 5, VS, True)
            stamp_out(a, cfg, 0, VS, 1, 32, 2, 60)
        a('s_endpgm')
        a.vm = []; a.lg = []

    def gath(c):
        a.wait(vm=[f'i{c}'])
        for i in (2*c, 2*c+1):
            a(f'v_lshlrev_b32 v{IN+i}, 3, v{IN+i}')
            if cfg.gl: a.vmem(f'global_load_dwordx2 v[{REC+2*i}:{REC+2*i+1}], v{IN+i}, s[28:29]', f'g{i}')
            else: a.vmem(f'buffer_load_dwordx2 v[{REC+2*i}:{REC+2*i+1}], v{IN+i}, s[28:31], 0 offen', f'g{i}')
    def pf():
        a('s_lshr_b32 s13, s2, 3')
        a('s_mul_i32 s13, s13, 40000')
        a('v_mul_u32_u24 v29, 40, v0')
        a.vmem('buffer_load_dword v29, v29, s[28:31], s13 offen', 'pf')
    def pfa(stride):
        na = 32 - 2*cfg.nB
        sl = -(-1280000 // na)
        n = -(-sl // (1000*stride))
        a(f's_sub_u32 s13, s2, {16*cfg.nB}')
        a('s_lshr_b32 s13, s13, 3')
        a(f's_mul_i32 s13, s13, {sl}')
        a(f'v_mul_u32_u24 v29, {stride}, v0')
        a(f'v_add_u32 v29, s13, v29')
        for i in range(n):
            a.vmem(f'buffer_load_dword v{90+i}, v29, s[28:31], 0 offen', f'pf{i}')
            if i + 1 < n: a(f'v_add_u32 v29, {1000*stride}, v29')
    def run(sched, ty):
        for t in expand(sched):
            k, c = t
            if k == 'O': ld_out(c)
            elif k == 'I': ld_in(c)
            elif k == 'A': ld_ang(c)
            elif k == 'PF': pf()
            elif k == 'PFA': pfa(c)
            elif k == 'SL': a(f's_sleep {c}')
            elif k == 'BAR': a('s_barrier')
            elif k == 'R': rank(c)
            elif k == 'G': gath(c)
            elif k == 'SCAN': scan(8 if ty == 'A' else 12, ty)
            elif k == 'C' and ty == 'A':
                cosd1(c, lambda i: REC + 2*i)
                a.wait(vm=[f'i{c}'])
                for i in (2*c, 2*c+1):
                    a(f'v_lshlrev_b32 v{REC+2*i+1}, 3, v{IN+i}')
                    a.lds(f'ds_write_b64 v{RK+i}, v[{REC+2*i}:{REC+2*i+1}]')
            elif k == 'C':
                cosd1(c, lambda i: OUT + i)
                for i in (2*c, 2*c+1): a.lds(f'ds_write_b32 v{RK+i}, v{OUT+i} offset:8')
            elif k == 'M':
                for i in (2*c, 2*c+1):
                    a.wait(vm=[f'g{i}'])
                    a.lds(f'ds_write2_b32 v{RK+i}, v{REC+2*i}, v{REC+2*i+1} offset0:0 offset1:1')
            else: raise Exception(t)
        copyout(5000 if ty == 'A' else 7500, ty)
    if cfg.nB < 16: run(cfg.sa, 'A')
    if cfg.nB > 0:
        a('k1_B:')
        run(cfg.sb, 'B')
    a('k1_end:')
    a('s_endpgm')
    return a.text(), 104 if cfg.diag else 96, RECB + 120000

def k2(cfg):
    a = Asm()
    caps = [int(x) for x in str(cfg.caps).split('/')]
    rmap = [int(x) for x in str(cfg.rmap)[1:]]
    NR = len(caps); CAP = max(caps)
    CNT = [2560*r for r in range(NR)]; C32 = 2560*NR; M64 = C32 + CAP*2500
    FB = M64 + CAP*5000
    LDS = FB + 20000
    assert M64 <= 65535 and LDS <= 163840
    R = lambda j: 8 + 4*j
    P, A_, G_, MO, DI = 72, 80, 88, 92, 94
    VSO, VCN, E4, E8, E8b, DF = 95, 96, 97, 98, 99, 100
    T = 102
    VS = 120
    isB = lambda j: j < cfg.nB
    rnd = lambda j: rmap[j]
    a('s_cmp_ge_u32 s2, 256')
    a('s_cbranch_scc1 k2_end')
    a('s_load_dwordx2 s[4:5], s[0:1], 104')
    a('s_load_dwordx2 s[8:9], s[0:1], 0')
    a('s_load_dwordx2 s[40:41], s[0:1], 24')
    a('s_load_dwordx4 s[36:39], s[0:1], 56')
    a('s_load_dwordx2 s[12:13], s[0:1], 88')
    a('s_load_dwordx4 s[16:19], s[0:1], 72')
    if cfg.diag:
        a('v_writelane_b32 v121, s2, 0')
        a('v_writelane_b32 v121, s0, 1')
        a('v_writelane_b32 v121, s1, 2')
        a(f'v_mov_b32 v{VS}, 0')
    stamp(a, cfg, 0, VS)
    a('v_lshrrev_b32 v4, 6, v0')
    a('v_and_b32 v5, 63, v0')
    a('s_and_b32 s3, s2, 7')
    a('s_lshl_b32 s3, s3, 5')
    a('s_lshr_b32 s2, s2, 3')
    a('s_add_u32 s2, s2, s3')
    a('v_readfirstlane_b32 s3, v4')
    srd(a, 4, WSZ); srd(a, 8, 1280000); srd(a, 12, 1280000)
    a('v_lshlrev_b32 v6, 14, v5')
    a('s_lshl_b32 s42, s3, 8')
    a('s_add_u32 s42, s42, s2')
    a('s_lshl_b32 s42, s42, 2')
    a(f's_add_u32 s42, s42, {OFFB + cfg.wsoff}')
    a('s_mov_b64 exec, 0xffff')
    a.wait_lg0()
    a.vmem(f'buffer_load_dword v{VCN}, v6, s[4:7], s42 offen', 'off')
    a('s_mov_b64 exec, -1')
    a('v_lshlrev_b32 v1, 3, v5')
    a('v_mul_u32_u24 v2, 12, v5')
    a('v_mov_b32 v3, 2500')
    a('v_lshl_add_u32 v6, v5, 4, v4')
    a(f'v_mul_u32_u24 v6, {STRIDE}, v6')
    if cfg.wsoff: a(f'v_add_u32 v6, {cfg.wsoff}, v6')
    a(f'v_cmp_gt_u32 vcc, {cfg.nB}, v5')
    a('v_cndmask_b32 v7, 8, 12, vcc')
    if cfg.gl:
        for j in range(cfg.nB, 16): a(f'v_mov_b32 v{R(j)+3}, 0')
    a('s_mul_i32 s2, s2, 5000')
    a('s_cmp_ge_u32 s3, 10')
    a('s_cbranch_scc1 k2_N')
    save = (list(a.vm), list(a.lg))

    def fbadd(r):
        a(f'v_and_b32 v{T}, 0x3ff, v{r+2}')
        a(f'v_lshlrev_b32 v{T}, 5, v{T}')
        a(f'v_add_u32 v{T}, {FB}, v{T}')
        a(f'v_fma_f32 v{T+1}, v{r+2}, v{r+2}, -0.5')
        for k in range(4):
            if k & 1: a(f'v_and_b32 v{T+2}, 0xffff0000, v{r+k//2}')
            else: a(f'v_lshlrev_b32 v{T+2}, 16, v{r+k//2}')
            a(f'v_mul_f32 v{T+3}, v{r+2}, v{T+2}')
            a(f'ds_add_f32 v{T}, v{T+3} offset:{4*k}')
            a(f'v_mul_f32 v{T+4}, v{T+1}, v{T+2}')
            a(f'ds_add_f32 v{T}, v{T+4} offset:{16+4*k}')
    def ex(j): a(f's_bfm_b64 exec, s{20+j}, 0')
    def L(j):
        ex(j)
        if isB(j): a.vmem(f'buffer_load_dwordx3 v[{R(j)}:{R(j)+2}], v2, s[4:7], s{36+j} offen{cfg.lf}', f'L{j}')
        else: a.vmem(f'buffer_load_dwordx2 v[{R(j)+2}:{R(j)+3}], v1, s[4:7], s{36+j} offen{cfg.lf}', f'L{j}')
    def G(j):
        ex(j)
        a.wait(vm=[f'L{j}'])
        if not isB(j):
            if cfg.gl: a.vmem(f'global_load_dwordx2 v[{R(j)}:{R(j)+1}], v{R(j)+3}, s[8:9]', f'G{j}')
            else: a.vmem(f'buffer_load_dwordx2 v[{R(j)}:{R(j)+1}], v{R(j)+3}, s[8:11], 0 offen', f'G{j}')
        a(f'v_and_b32 v{T}, 0x3ff, v{R(j)+2}')
        a(f'v_lshlrev_b32 v{T}, 2, v{T}')
        a.lds(f'ds_add_rtn_u32 v{R(j)+3}, v{T}, v3 offset:{CNT[rnd(j)]}', f'r{j}')
    def W(j, cls):
        ex(j)
        a.wait(vm=[f'G{j}'], lg=[f'r{j}'])
        a(f'v_cmp_le_u32 vcc, {caps[rnd(j)]*2500}, v{R(j)+3}')
        a(f'v_lshlrev_b32 v{T+6}, 1, v{R(j)+3}')
        a(f's_cbranch_vccnz k2_ov{cls}{j}')
        a(f'k2_ovr{cls}{j}:')
        a.lds(f'ds_write_b32 v{R(j)+3}, v{R(j)+2} offset:{C32}')
        a.lds(f'ds_write_b64 v{T+6}, v[{R(j)}:{R(j)+1}] offset:{M64}')
        with a.ool():
            a(f'k2_ov{cls}{j}:')
            a('s_and_saveexec_b64 s[0:1], vcc')
            fbadd(R(j))
            a('s_andn2_b64 exec, s[0:1], vcc')
            a(f's_branch k2_ovr{cls}{j}')
    def decode(cls, order):
        a.wait(vm=['off'])
        stamp(a, cfg, 1, VS)
        a('s_mov_b64 exec, 0xffff')
        a(f'v_and_b32 v{VSO}, 0xffff, v{VCN}')
        a(f'v_lshrrev_b32 v{VCN}, 16, v{VCN}')
        a(f'v_mad_u32_u24 v{VSO}, v{VSO}, v7, v6')
        a(f'v_min_u32 v{T}, 63, v{VCN}')
        for j in order:
            a(f'v_readlane_b32 s{36+j}, v{VSO}, {j}')
            a(f'v_readlane_b32 s{20+j}, v{T}, {j}')
    def LEFT(cls):
        a('s_mov_b64 exec, 0xffff')
        a(f'v_cmp_lt_u32 vcc, 63, v{VCN}')
        a(f's_cbranch_vccnz k2_left{cls}')
        a(f'k2_leftr{cls}:')
        with a.ool():
            U = T + 8
            a(f'k2_left{cls}:')
            a('s_mov_b64 s[36:37], vcc')
            a(f'k2_lj{cls}:')
            a('s_ff1_i32_b64 s38, s[36:37]')
            a('s_bitset0_b64 s[36:37], s38')
            a(f'v_readlane_b32 s39, v{VSO}, s38')
            a(f'v_readlane_b32 s40, v{VCN}, s38')
            a(f'v_readlane_b32 s41, v7, s38')
            a('s_nop 4')
            a('s_mul_i32 s41, s41, 63')
            a('s_sub_u32 s40, s40, 63')
            a(f'k2_lc{cls}:')
            a('s_add_u32 s39, s39, s41')
            a('s_min_u32 s42, s40, 63')
            a('s_bfm_b64 exec, s42, 0')
            a(f's_cmp_lt_u32 s38, {cfg.nB}')
            a(f's_cbranch_scc1 k2_lb{cls}')
            a(f'buffer_load_dwordx2 v[{U+2}:{U+3}], v1, s[4:7], s39 offen')
            a('s_waitcnt vmcnt(0)')
            a(f'buffer_load_dwordx2 v[{U}:{U+1}], v{U+3}, s[8:11], 0 offen')
            a(f's_branch k2_ld{cls}')
            a(f'k2_lb{cls}:')
            a(f'buffer_load_dwordx3 v[{U}:{U+2}], v2, s[4:7], s39 offen')
            a(f'k2_ld{cls}:')
            a('s_waitcnt vmcnt(0)')
            fbadd(U)
            a('s_sub_u32 s40, s40, s42')
            a('s_cmp_lg_u32 s40, 0')
            a(f's_cbranch_scc1 k2_lc{cls}')
            a('s_cmp_lg_u64 s[36:37], 0')
            a(f's_cbranch_scc1 k2_lj{cls}')
            a(f's_branch k2_leftr{cls}')
    def bar():
        a.wait_lg0(); a('s_barrier')
    def exR(): a('s_mov_b64 exec, s[98:99]') if False else None
    def edge_exec():
        a('s_mov_b64 exec, -1')
        a('v_cmpx_gt_u32 vcc, 625, v0')
    def rnd2(x, y):
        a(f'v_cvt_pk_bf16_f32 v{y}, v{x}, v{y}')
        a(f'v_lshlrev_b32 v{x}, 16, v{y}')
        a(f'v_and_b32 v{y}, 0xffff0000, v{y}')
    bc = lambda h: f'op_sel:[{h},0,0] op_sel_hi:[{h},1,1]'
    bcm = lambda h: f'op_sel:[{h},0] op_sel_hi:[{h},1]'
    def unpack(dst, src):
        a(f's_lshl_b32 s{dst}, s{src}, 16')
        a(f's_and_b32 s{dst+1}, s{src}, 0xffff0000')
    def PRE(parts=None):
        edge_exec()
        a.wait(vm=['dist'])
        a.wait_lg0()
        a(f'v_lshlrev_b32 v{DI}, 16, v{DI}')
        tp = [0]
        for r0 in range(0, 8, 2):
            x, y = T + 8, T + 9
            for h, v in enumerate((x, y)): a(f'v_subrev_f32 v{v}, {hex(CENTERS[r0+h])}, v{DI}')
            rnd2(x, y)
            for v in (x, y): a(f'v_mul_f32 v{v}, v{v}, v{v}')
            rnd2(x, y)
            for v in (x, y): a(f'v_mul_f32 v{v}, 0xc1200000, v{v}')
            rnd2(x, y)
            for v in (x, y): a(f'v_mul_f32 v{v}, 0x3fb8aa3b, v{v}')
            for v in (x, y): a(f'v_exp_f32 v{v}, v{v}')
            rnd2(x, y)
            for h in range(2):
                r = r0 + h
                for (dst, src) in [(A_, 52+4*r), (A_+2, 53+4*r), (A_+4, 54+4*r), (A_+6, 55+4*r), (G_, 84+2*r), (G_+2, 85+2*r)]:
                    s = ['s3', 'vcc_lo', 'vcc_hi'][tp[0] % 3]; tp[0] += 1
                    a(f's_lshl_b32 {s}, s{src}, 16')
                    a(f's_and_b32 s{src}, s{src}, 0xffff0000')
                    op = 'v_mul_f32' if r == 0 else 'v_fmac_f32'
                    a(f'{op} v{dst}, {s}, v{x+h}')
                    a(f'{op} v{dst+1}, s{src}, v{x+h}')
        a('s_load_dwordx8 s[52:59], s[16:17], 0')
        a('s_load_dwordx8 s[60:67], s[18:19], 0')
        for d in range(4, 8): a(f'v_add_f32 v{A_+d}, v{A_+d}, v{A_+d}')
        rnd2(G_, G_+1); rnd2(G_+2, G_+3)
    def RO(rd, bufs):
        cap = caps[rd]
        edge_exec()
        a.lds(f'ds_read_b32 v{DF}, v{E4} offset:{CNT[rd]}', 'cnt')
        nb = len(bufs)
        def rdslot(s):
            b = bufs[s % nb]
            a.lds(f'ds_read_b32 v{b+2}, v{E4} offset:{C32+2500*s}', f'c{s}')
            if s <= 13: a.lds(f'ds_read_b64 v[{b}:{b+1}], v{E8} offset:{5000*s}', f'm{s}')
            else: a.lds(f'ds_read_b64 v[{b}:{b+1}], v{E8b} offset:{5000*(s-14)}', f'm{s}')
        D = min(nb - 1, cfg.rod)
        for s in range(D): rdslot(s)
        a.wait(lg=['cnt'])
        a(f'v_sub_u32 v{DF}, v{DF}, v{E4}')
        for s in range(cap):
            b = bufs[s % nb]
            a(f'v_cmpx_lt_u32 vcc, {2500*s}, v{DF}')
            if s >= cap - 5: a(f's_cbranch_execz k2_rodone{rd}')
            if s + D < cap: rdslot(s + D)
            a.wait(lg=[f'm{s}'])
            a(f'v_fma_f32 v{b+3}, v{b+2}, v{b+2}, -0.5')
            a(f'v_lshlrev_b32 v{T}, 16, v{b}')
            a(f'v_and_b32 v{b}, s3, v{b}')
            a(f'v_lshlrev_b32 v{T+1}, 16, v{b+1}')
            a(f'v_and_b32 v{b+1}, s3, v{b+1}')
            for l in range(2):
                for k, src in enumerate((T, b, T+1, b+1)):
                    a(f'v_fmac_f32 v{P+4*l+k}, v{b+2+l}, v{src}')
        a(f'k2_rodone{rd}:')
        a.wait_lg0()
    def FIN0():
        for i in range(8): unpack(36 + 2*i, 52 + i)
        for i in range(8): unpack(68 + 2*i, 60 + i)
    def FIN():
        edge_exec()
        a(f'v_lshlrev_b32 v{E8}, 5, v0')
        a(f'v_add_u32 v{E8}, {FB}, v{E8}')
        a.lds(f'ds_read_b128 v[8:11], v{E8}', 'f0')
        a.lds(f'ds_read_b128 v[12:15], v{E8} offset:16', 'f1')
        a.wait(vm=['mo'])
        a(f'v_lshlrev_b32 v28, 16, v{MO}')
        a(f'v_and_b32 v29, s3, v{MO}')
        a(f'v_lshlrev_b32 v30, 16, v{MO+1}')
        a(f'v_and_b32 v31, s3, v{MO+1}')
        a(f'v_lshlrev_b32 v{E8}, 3, v0')
        a.wait_lg0()
        for i in range(8): a(f'v_add_f32 v{P+i}, v{P+i}, v{8+i}')
        S = 16
        for k in range(4):
            for l in range(2):
                for d in range(4):
                    a(f'{"v_mul_f32" if k == 0 else "v_fmac_f32"} v{S+4*l+d}, s{36+4*k+d}, v{P+4*l+k}')
        for d in range(4): a(f'v_mul_f32 v{S+d}, v{S+d}, v{A_+d}')
        for d in range(4): a(f'v_fmac_f32 v{S+d}, v{S+4+d}, v{A_+4+d}')
        rnd2(S, S+1); rnd2(S+2, S+3)
        U = 24
        for k in range(4):
            for d in range(4):
                a(f'{"v_mul_f32" if k == 0 else "v_fmac_f32"} v{U+d}, s{68+4*k+d}, v{S+k}')
        rnd2(U, U+1); rnd2(U+2, U+3)
        for d in range(4): a(f'v_mul_f32 v{U+d}, v{U+d}, v{G_+d}')
        rnd2(U, U+1); rnd2(U+2, U+3)
        for d in range(4): a(f'v_add_f32 v{U+d}, v{U+d}, v{28+d}')
        a(f'v_cvt_pk_bf16_f32 v{U}, v{U}, v{U+1}')
        a(f'v_cvt_pk_bf16_f32 v{U+1}, v{U+2}, v{U+3}')
        a.vmem(f'buffer_store_dwordx2 v[{U}:{U+1}], v{E8}, s[12:15], s2 offen', 'st')

    def body(cls):
        isR = cls == 'R'
        if isR:
            a('s_load_dwordx16 s[52:67], s[38:39], 0')
            a('s_load_dwordx16 s[68:83], s[38:39], 64')
            a('s_load_dwordx16 s[84:99], s[36:37], 0')
            a('v_cmpx_gt_u32 vcc, 625, v0')
            a(f'v_lshlrev_b32 v{E4}, 2, v0')
            a(f'v_lshlrev_b32 v{E8}, 3, v0')
            a('s_lshr_b32 s42, s2, 2')
            a(f'v_lshl_add_u32 v{T}, v0, 1, s42')
            a.vmem(f'global_load_ushort v{DI}, v{T}, s[40:41]', 'dist')
            a.vmem(f'buffer_load_dwordx2 v[{MO}:{MO+1}], v{E8}, s[8:11], s2 offen', 'mo')
            for i in range(8): a(f'v_mov_b32 v{P+i}, 0')
            for r in range(NR): a(f'ds_write_b32 v{E4}, v{E4} offset:{CNT[r]}')
            a(f'v_lshlrev_b32 v{T}, 5, v0')
            a(f'v_add_u32 v{T}, {FB}, v{T}')
            a(f'ds_write_b128 v{T}, v[{P}:{P+3}]')
            a(f'ds_write_b128 v{T}, v[{P}:{P+3}] offset:16')
            a(f'v_add_u32 v{E8}, {M64}, v{E8}')
            a(f'v_add_u32 v{E8b}, 70000, v{E8}')
        bar()
        ops = expand(cfg.sr if isR else cfg.sn)
        order = [j for k, j in ops if k == 'L']
        assert sorted(order) == list(range(16))
        for kk in 'GW': assert sorted(j for k, j in ops if k == kk) == list(range(16)), kk
        decode(cls, order)
        done = set(); nl = 0; pre = False
        for k, j in ops:
            if k == 'L':
                L(j); nl += 1
                if nl == 16: LEFT(cls)
            elif k == 'G': G(j)
            elif k == 'W': W(j, cls); done.add(j)
            elif k == 'PRE':
                PRE(); a('s_mov_b32 s3, 0xffff0000'); pre = True
            elif k == 'BAR': bar()
            elif k == 'SB': a('s_barrier')
            elif k == 'ST': stamp(a, cfg, j, VS)
            elif k == 'PRIO': a(f's_setprio {j}')
            elif k == 'RO':
                a('s_mov_b32 s3, 0xffff0000')
                RO(j, [R(x) for x in sorted(done)][:8])
            elif k == 'FINA':
                assert pre and nl == 16
                a.wait_lg0(); FIN0()
            elif k == 'FIN': FIN()
            else: raise Exception(k)
        if cfg.diag:
            a.wait_vm0()
            stamp(a, cfg, 7, VS, True)
            if cfg.diag == 2:
                a('v_readlane_b32 s0, v121, 1')
                a('v_readlane_b32 s1, v121, 2')
                a('s_nop 4')
                a('s_load_dwordx2 s[98:99], s[0:1], 96')
                a('s_waitcnt lgkmcnt(0)')
            a('v_readlane_b32 s2, v121, 0')
            stamp_out(a, cfg, 1, VS, 1, 4, 2, 98)
        a('s_endpgm')
    body('R')
    a('k2_N:')
    a.vm, a.lg = save
    body('N')
    a('k2_end:')
    a('s_endpgm')
    return a.text(), 124 if cfg.diag else 120, LDS

def desc(name, vg):
    return f'''.amdhsa_kernel {name}
  .amdhsa_next_free_vgpr {vg}
  .amdhsa_next_free_sgpr 102
  .amdhsa_accum_offset {(vg+3)//4*4}
  .amdhsa_group_segment_fixed_size 0
  .amdhsa_kernarg_size 112
  .amdhsa_user_sgpr_count 2
  .amdhsa_user_sgpr_kernarg_segment_ptr 1
  .amdhsa_system_sgpr_workgroup_id_x 1
.end_amdhsa_kernel
'''

def build(cfg):
    t1, v1, l1 = k1(cfg); t2, v2, l2 = k2(cfg)
    n1, n2 = 'gemnet_bin_kernel', NAME + '_kernel'
    s = HDR
    ks = [(n1, t1, v1, l1), (n2, t2, v2, l2)]
    em = '; @launch kernel=empty_kernel grid=(1,1,1) block=(64,1,1) lds=0\n'
    s += em * cfg.epre
    for r in range(cfg.rep):
        s += f'; @launch kernel={n1} grid=(256,1,1) block=(1024,1,1) lds={l1}\n'
        s += f'; @launch kernel={n2} grid=(256,1,1) block=(1024,1,1) lds={l2}\n' * cfg.rep2
    s += em * cfg.epost
    etext = '    s_endpgm\n'
    if cfg.probe:
        etext = f'''    s_cmp_ge_u32 s2, 1
    s_cbranch_scc1 pr_end
    s_load_dwordx2 s[4:5], s[0:1], 104
    s_waitcnt lgkmcnt(0)
    s_add_u32 s4, s4, {DIAGB + cfg.probek * 262144}
    s_addc_u32 s5, s5, 0
    s_load_dword s6, s[4:5], {cfg.probes * 4}
    s_mov_b32 s7, 20000
pr_l:
    s_memrealtime s[8:9]
    s_waitcnt lgkmcnt(0)
    s_sub_u32 s8, s8, s6
    s_sub_u32 s7, s7, 1
    s_cmp_eq_u32 s7, 0
    s_cbranch_scc1 pr_end
    s_cmp_lt_u32 s8, {cfg.probe}
    s_cbranch_scc1 pr_l
pr_end:
    s_endpgm
'''
    if cfg.epre or cfg.epost: ks.append(('empty_kernel', etext, 8, 0))
    s += '.amdgcn_target "amdgcn-amd-amdhsa--gfx950"\n.text\n'
    for n, t, v, l in ks:
        s += f'.globl {n}\n.p2align 8\n.type {n},@function\n{n}:\n{t}'
    s += '.section .rodata,"a"\n'
    for n, t, v, l in ks: s += '.p2align 6\n' + desc(n, v)
    return s

if __name__ == '__main__':
    ap = argparse.ArgumentParser()
    ap.add_argument('-o', default='cdna_kernels/' + NAME + '.s')
    ap.add_argument('kv', nargs='*')
    x = ap.parse_args()
    cfg = Cfg(); cfg.probe = 0; cfg.probek = 0; cfg.probes = 0; cfg.epre = 0; cfg.epost = 0; cfg.rep = 1; cfg.rep2 = 1
    cfg.caps = '16/16'; cfg.rmap = 'r0000000011111111'; cfg.rod = 5; cfg.lf = ''; cfg.gl = 0
    cfg.sa = 'O0-4 BAR I,A0-4 R0-4 SCAN C0-4'
    cfg.sb = 'I0-4 BAR O0-4 G0-1 R0-4 A0-4 SCAN G2-4 C0-4 M0-4'
    cfg.sr = 'L8-15 L0-7 ST2 G8-9 G0-7 W0-7,G10-15 BAR ST3 RO0 BAR ST4 PRE W8-15 FINA BAR ST5 RO1 ST6 FIN'
    cfg.sn = 'L8-15 L0-7 ST2 G8-9 G0-7 W0-7,G10-15 BAR ST3 BAR ST4 W8-15 BAR ST5'
    for kv in x.kv:
        k, v = kv.split('=', 1)
        try: v = int(v, 0)
        except ValueError: v = v.replace('_', ' ')
        setattr(cfg, k, v)
    open(x.o, 'w').write(build(cfg))
```

```python
import re
TRANS = ('v_exp_', 'v_log_', 'v_rcp_', 'v_rsq_', 'v_sqrt_', 'v_sin_', 'v_cos_')

def regs(tok):
    tok = tok.strip()
    tok = re.sub(r'^-|^\||\|$', '', tok)
    tok = tok.replace('neg(', '').replace('abs(', '').replace(')', '')
    m = re.fullmatch(r'([vs])(\d+)', tok)
    if m: return {m.group(1) + m.group(2)}
    m = re.fullmatch(r'([vs])\[(\d+):(\d+)\]', tok)
    if m: return {m.group(1) + str(i) for i in range(int(m.group(2)), int(m.group(3)) + 1)}
    if tok == 'vcc': return {'vcc_lo', 'vcc_hi'}
    if tok == 'exec': return {'exec_lo', 'exec_hi'}
    if tok in ('vcc_lo', 'vcc_hi', 'exec_lo', 'exec_hi', 'm0'): return {tok}
    return set()

def parse(line):
    s = line.split(';')[0].strip()
    if not s or s.endswith(':') or s.startswith('.'): return None
    p = s.split(None, 1)
    op = p[0]
    rest = p[1] if len(p) > 1 else ''
    ops = [o.strip() for o in rest.split(',')]
    last = ops[-1].split()
    mods = ' '.join(last[1:]) if last else ''
    if last: ops[-1] = last[0]
    return op, ops, mods

def info(line):
    r = parse(line)
    if r is None: return None
    op, ops, mods = r
    d = dict(op=op, valu=op.startswith('v_'), vmem=op.startswith(('buffer_', 'global_')),
             ds=op.startswith('ds_'), dst=set(), src=set(), dpp=('row_' in mods or 'quad_perm' in mods or 'wave_' in mods),
             trans=op.startswith(TRANS), sdwa=('_sdwa' in op or 'dst_sel' in mods), store=set(), nop=0)
    if op == 's_nop': d['nop'] = int(ops[0], 0) + 1
    if d['valu']:
        d['dst'] = regs(ops[0])
        srcs = ops[1:]
        if op.startswith(('v_add_co', 'v_sub_co', 'v_addc_co', 'v_subb_co')):
            d['dst'] |= regs(ops[1]); srcs = ops[2:]
        for o in srcs: d['src'] |= regs(o)
        if op.startswith('v_cmpx'): d['dst'] |= {'exec_lo', 'exec_hi'}
        if op.startswith(('v_fmac', 'v_mac', 'v_writelane', 'v_permlane', 'v_swap')): d['src'] |= regs(ops[0])
        if op.startswith('v_cndmask') and len(ops) == 3: d['src'] |= {'vcc_lo', 'vcc_hi'}
        if op.startswith('v_mfma'):
            d['mfma'] = True; d['srcc'] = regs(ops[3]); d['srcab'] = regs(ops[1]) | regs(ops[2])
        d['lanesel'] = regs(ops[2]) if op.startswith(('v_readlane', 'v_writelane')) else set()
    elif d['vmem']:
        if 'store' in op:
            for o in ops: d['src'] |= regs(o)
            if 'x3' in op or 'x4' in op:
                d['store'] = regs(ops[0]) if op.startswith('buffer') else regs(ops[1])
        else:
            d['dst'] = regs(ops[0])
            for o in ops[1:]: d['src'] |= regs(o)
    elif d['ds']:
        if 'read' in op or 'rtn' in op or 'permute' in op:
            d['dst'] = regs(ops[0])
            for o in ops[1:]: d['src'] |= regs(o)
        else:
            for o in ops: d['src'] |= regs(o)
    return d

def need(p, c):
    n = 0
    if p.get('mfma'):
        if c.get('mfma'):
            if p['dst'] & c['srcab']: n = max(n, 5)
            if p['dst'] & (c['srcc'] | c['dst']): n = max(n, 2 if p['dst'] == c['srcc'] else 4)
        else:
            if p['dst'] & (c['src'] | c['dst']): n = max(n, 5)
            if c['valu'] and p['srcc'] & c['dst']: n = max(n, 1)
        return n
    if p['valu'] and c.get('mfma'):
        if p['dst'] & c['src']: n = max(n, 2)
        if 'exec_lo' in p['dst']: n = max(n, 4)
    if p['valu']:
        sd = {r for r in p['dst'] if not r.startswith('v') or r.startswith('vcc')}
        sd_noexec = {r for r in sd if not r.startswith('exec')}
        vd = p['dst'] - sd
        wexec = 'exec_lo' in p['dst'] or 'exec_hi' in p['dst']
        if c['vmem'] and sd_noexec & c['src']: n = max(n, 5)
        if c['valu']:
            if sd_noexec & c['src']: n = max(n, 2)
            if sd_noexec & c.get('lanesel', set()): n = max(n, 4)
            if c['dpp'] and vd & c['src']: n = max(n, 2)
            if c['dpp'] and wexec: n = max(n, 5)
            if wexec and c['op'].startswith(('v_readlane', 'v_readfirstlane', 'v_writelane', 'v_permlane')): n = max(n, 4)
            if wexec and ({'exec_lo', 'exec_hi'} & c['src']): n = max(n, 2)
            if c['op'].startswith(('v_readlane', 'v_readfirstlane')) and vd & c['src']: n = max(n, 1)
            if c['op'].startswith('v_permlane') and vd & c['src']: n = max(n, 2)
            if p['trans'] and vd & c['src']: n = max(n, 1)
            if p['sdwa'] and vd & (c['src'] | c['dst']): n = max(n, 1)
        if p['trans'] and (c['vmem'] or c['ds']) and vd & c['src']: n = max(n, 1)
    if p['store'] and p['store'] & c['dst']:
        n = max(n, 2)
    return n

def fix(lines):
    out = []; hist = []
    added = 0
    for l in lines:
        d = info(l)
        if d is None:
            out.append(l); continue
        dist = 0; pad = 0
        for p in reversed(hist):
            n = need(p, d)
            if n > dist: pad = max(pad, n - dist)
            dist += p['nop'] if p['nop'] else 1
            if dist >= 5: break
        if pad:
            out.append(f'    s_nop {pad-1}')
            hist.append(info(f's_nop {pad-1}')); added += 1
        out.append(l); hist.append(d)
        hist = hist[-8:]
    return out, added
```

```python
import sys, argparse
from asmlib import Asm

NAME = 'standalone__molecular_angular_gemnet__graph'
HDR = open('cdna_kernels/' + NAME + '.s.ref').read().split('; Override launch')[0]

STRIDE = 40448
BBASE = 256 * STRIDE
OFFB = BBASE + 64 * STRIDE
SCALE = 2145386496.0
import struct
def f2h(x): return hex(struct.unpack('<I', struct.pack('<f', x))[0])
DIAGB = 64 << 20
WSZ = 0x10000000
CENTERS = [0x00000000, 0x3e120000, 0x3e920000, 0x3edb0000, 0x3f120000, 0x3f370000, 0x3f5b0000, 0x3f800000]

class Cfg:
    nB = 8; n1 = 8; cap = 16; diag = False; sched = 'a'; ldnt = ' nt'; stf = ' sc1'; wsoff = 0

def expand(sched):
    import re
    out = []
    for t in sched.split():
        parts = t.split(',')
        seqs = []
        for p in parts:
            m = re.fullmatch(r'([A-Z]+)(?:(\d+)(?:-(\d+))?)?', p)
            k, lo, hi = m.groups()
            seqs.append((k, None if lo is None else list(range(int(lo), int(hi or lo) + 1))))
        last = seqs[-1][1]
        if last is None: out.append((seqs[0][0], None)); continue
        n = max(len(q or last) for _, q in seqs)
        for i in range(n):
            for k, q in seqs:
                q = q or last
                if i < len(q): out.append((k, q[i]))
    return out

def srd(a, r, size):
    a(f's_mov_b32 s{r+2}, {size}')
    a(f's_mov_b32 s{r+3}, 0x20000')

def stamp(a, cfg, k, vs, clk=False):
    if not cfg.diag: return
    a('s_memrealtime s[100:101]')
    a.wait_lg0()
    a(f'v_writelane_b32 v{vs}, s100, {k}')
    if k == 0 or clk:
        a('s_memtime s[100:101]')
        a.wait_lg0()
        a(f'v_writelane_b32 v{vs}, s100, {14 if k == 0 else 15}')

def stamp_out(a, cfg, kern, vs, vt, wsrd, swg, dbg=0):
    if not cfg.diag: return
    if cfg.diag == 2:
        a(f'v_readlane_b32 s100, v{vs}, 0')
        a('s_not_b32 s100, s100')
        a(f'v_writelane_b32 v{vs}, s100, {6 if kern == 0 else 2}')
        a('s_mov_b64 exec, -1')
        a(f'v_lshlrev_b32 v0, 2, v0')
        a('v_cmpx_gt_u32 vcc, 32, v0')
        l = a.label(f'dg{kern}')
        a(f's_cbranch_execz {l}')
        a(f'global_atomic_umax v0, v{vs}, s[{dbg}:{dbg+1}] offset:{512 if kern == 0 else 32}')
        a(f'{l}:')
        return
    a('s_mov_b64 exec, 0xffff')
    a(f'v_lshrrev_b32 v{vt}, 6, v0')
    a(f'v_lshlrev_b32 v{vt}, 6, v{vt}')
    a(f'v_and_b32 v0, 63, v0')
    a(f'v_lshl_add_u32 v{vt}, v0, 2, v{vt}')
    a(f's_lshl_b32 s100, s{swg}, 10')
    a(f's_add_u32 s100, s100, {DIAGB + kern * 262144}')
    a(f'buffer_store_dword v{vs}, v{vt}, s[{wsrd}:{wsrd+3}], s100 offen')

def k1(cfg):
    a = Asm()
    OUT, IN, ANG, BIN, RK, BS, VS = 4, 14, 24, 30, 40, 50, 100
    CNT, BASE, RECB = 0, 1024, 2048
    a('s_cmp_ge_u32 s2, 256')
    a('s_cbranch_scc1 k1_end')
    a('s_load_dwordx2 s[16:17], s[0:1], 16')
    a('s_load_dwordx2 s[20:21], s[0:1], 8')
    a('s_load_dwordx2 s[24:25], s[0:1], 32')
    a('s_load_dwordx2 s[28:29], s[0:1], 0')
    a('s_load_dwordx2 s[32:33], s[0:1], 104')
    stamp(a, cfg, 0, VS)
    srd(a, 16, 10240000); srd(a, 20, 10240000); srd(a, 24, 5120000); srd(a, 28, 1280000); srd(a, 32, WSZ)
    a('v_lshlrev_b32 v1, 3, v0')
    a('v_lshlrev_b32 v2, 2, v0')
    a('s_mul_i32 s40, s2, 40000')
    for c in range(1, 5): a(f's_add_u32 s{40+c}, s40, {8000*c}')
    for c in range(5): a(f's_lshr_b32 s{45+c}, s{40+c}, 1')
    a('v_mov_b32 v3, 0')
    a('v_cmp_gt_u32 vcc, 256, v0')
    a('s_and_saveexec_b64 s[4:5], vcc')
    a.lds(f'ds_write_b32 v2, v3 offset:{CNT}')
    a('s_mov_b64 exec, s[4:5]')
    a('v_mov_b32 v3, 1')
    a('v_cmp_gt_u32 vcc, 1000, v0')
    a('s_and_b64 exec, exec, vcc')
    a(f's_mul_i32 s50, s2, {STRIDE}')
    a('s_add_u32 s51, s50, 16384')
    a('s_add_u32 s52, s50, 32768')
    a('s_lshr_b32 s53, s50, 2')
    a(f's_add_u32 s53, s53, {BBASE + 32768 - 40000}')
    a('s_add_u32 s54, s53, 16384')
    a(f'v_mov_b32 v73, {f2h(SCALE)}')
    a('s_mov_b32 s8, 6871948')
    a('s_mov_b32 s9, -625')
    a('s_mov_b32 s10, 0xfffff')
    a('s_lshl_b32 s12, s2, 10')
    a(f's_add_u32 s12, s12, {OFFB}')
    a.wait_lg0()
    def ld_out(c): a.vmem(f'buffer_load_dwordx2 v[{OUT+2*c}:{OUT+2*c+1}], v1, s[16:19], s{40+c} offen{cfg.ldnt}', f'o{c}')
    def ld_in(c): a.vmem(f'buffer_load_dwordx2 v[{IN+2*c}:{IN+2*c+1}], v1, s[20:23], s{40+c} offen{cfg.ldnt}', f'i{c}')
    def ld_ang(c): a.vmem(f'buffer_load_dword v{ANG+c}, v2, s[24:27], s{45+c} offen{cfg.ldnt}', f'a{c}')
    def rank(c):
        a.wait(vm=[f'o{c}'])
        for i in (2*c, 2*c+1):
            a(f'v_mul_hi_u32_u24 v{BIN+i}, s8, v{OUT+i}')
            a(f'v_mad_i32_i24 v{OUT+i}, v{BIN+i}, s9, v{OUT+i}')
            a(f'v_lshlrev_b32 v{BIN+i}, 2, v{BIN+i}')
            a.lds(f'ds_add_rtn_u32 v{RK+i}, v{BIN+i}, v3 offset:{CNT}', f'r{i}')
    def scan():
        a.wait_lg0()
        stamp(a, cfg, 1, VS)
        a('s_barrier')
        a('v_readfirstlane_b32 s3, v0')
        a('s_cmp_ge_u32 s3, 64')
        a(f's_cbranch_scc1 k1_noscan')
        T = 60
        a(f'v_lshlrev_b32 v{T+12}, 4, v0')
        a(f'ds_read_b128 v[{T}:{T+3}], v{T+12} offset:{CNT}')
        a('s_waitcnt lgkmcnt(0)')
        a(f'v_add_u32 v{T+5}, v{T}, v{T+1}')
        a(f'v_add_u32 v{T+6}, v{T+5}, v{T+2}')
        a(f'v_add_u32 v{T+7}, v{T+6}, v{T+3}')
        a(f'v_mov_b32 v{T+4}, v{T+7}')
        for d in ('row_shr:1 row_mask:0xf', 'row_shr:2 row_mask:0xf', 'row_shr:4 row_mask:0xf', 'row_shr:8 row_mask:0xf',
                  'row_bcast:15 row_mask:0xa', 'row_bcast:31 row_mask:0xc'):
            a(f'v_add_u32_dpp v{T+4}, v{T+4}, v{T+4} {d} bank_mask:0xf')
        a(f'v_sub_u32 v{T+4}, v{T+4}, v{T+7}')
        a(f'v_add_u32 v{T+7}, v{T+4}, v{T+6}')
        a(f'v_add_u32 v{T+6}, v{T+4}, v{T+5}')
        a(f'v_add_u32 v{T+5}, v{T+4}, v{T}')
        a(f'ds_write_b128 v{T+12}, v[{T+4}:{T+7}] offset:{BASE}')
        for i in range(4): a(f'v_lshl_or_b32 v{T+i}, v{T+i}, 16, v{T+4+i}')
        a(f'buffer_store_dwordx4 v[{T}:{T+3}], v{T+12}, s[32:35], s12 offen{cfg.stf}')
        a('s_waitcnt lgkmcnt(0)')
        a(f'k1_noscan:')
        a('s_barrier')
        for i in range(10): a.lds(f'ds_read_b32 v{BS+i}, v{BIN+i} offset:{BASE}', f'b{i}')
        stamp(a, cfg, 2, VS)
    def enc(c):
        T = 74
        a.wait(vm=[f'i{c}'])
        for h in range(2):
            i = 2*c + h
            a(f'v_mul_hi_u32_u24 v{T+h}, s8, v{IN+i}')
            a(f'v_mad_i32_i24 v{IN+i}, v{T+h}, s9, v{IN+i}')
            a(f'v_lshl_or_b32 v{OUT+i}, v{IN+i}, 10, v{OUT+i}')
            a(f'v_mov_b32 v{IN+i}, v{T+h}')
        a.wait(vm=[f'a{c}'])
        a(f'v_lshlrev_b32 v{T}, 16, v{ANG+c}')
        a(f'v_and_b32 v{T+1}, 0xffff0000, v{ANG+c}')
        for h in range(2): a(f'v_mul_f32 v{T+h}, 0.15915494, v{T+h}')
        for h in range(2): a(f'v_fract_f32 v{T+h}, v{T+h}')
        for h in range(2): a(f'v_cos_f32 v{T+h}, v{T+h}')
        for h in range(2): a(f'v_fmaak_f32 v{T+h}, v73, v{T+h}, 0x49000000')
        for h in range(2): a(f'v_cvt_i32_f32 v{T+h}, v{T+h}')
        for h in range(2): a(f'v_sub_u32 v{T+h}, v{T+h}, v{OUT+2*c+h}')
        for h in range(2): a(f'v_bfi_b32 v{OUT+2*c+h}, s10, v{OUT+2*c+h}, v{T+h}')
    def wr(c):
        for i in (2*c, 2*c+1):
            a.wait(lg=[f'b{i}'])
            a(f'v_add_u32 v{RK+i}, v{RK+i}, v{BS+i}')
            a(f'v_lshlrev_b32 v{BS+i}, 2, v{RK+i}')
            a.lds(f'ds_write_b8 v{RK+i}, v{IN+i} offset:{RECB+40000}')
            a.lds(f'ds_write_b32 v{BS+i}, v{OUT+i} offset:{RECB}')
    def pf():
        a('s_lshr_b32 s13, s2, 3')
        a('s_mul_i32 s13, s13, 40000')
        a('v_mul_u32_u24 v29, 40, v0')
        a.vmem('buffer_load_dword v29, v29, s[28:31], s13 offen', 'pf')
    def copyout():
        a.wait_lg0()
        stamp(a, cfg, 3, VS)
        a('s_mov_b64 exec, -1')
        a('v_lshlrev_b32 v1, 4, v0')
        a('v_mov_b32 v2, s52')
        a('v_mov_b32 v3, s53')
        a(f'v_cmp_gt_u32 vcc, {2500-2048}, v0')
        a('v_cndmask_b32 v2, v3, v2, vcc')
        a('v_add_u32 v2, v2, v1')
        a('s_barrier')
        for i in range(4): a.lds(f'ds_read_b128 v[{4+4*i}:{7+4*i}], v1 offset:{RECB+16384*i}', f'c{i}')
        for i in range(4):
            if i == 3:
                a(f'v_cmpx_gt_u32 vcc, {3125-3072}, v0')
                a(f's_cbranch_execz k1_skip')
            a.wait(lg=[f'c{i}'])
            ad = ['v1, s[32:35], s50', 'v1, s[32:35], s51', 'v2, s[32:35], 0', 'v1, s[32:35], s54'][i]
            a.vmem(f'buffer_store_dwordx4 v[{4+4*i}:{7+4*i}], {ad} offen{cfg.stf}', f's{i}')
        a(f'k1_skip:')
    for k, c in expand(cfg.sa):
        if k == 'O': ld_out(c)
        elif k == 'I': ld_in(c)
        elif k == 'A': ld_ang(c)
        elif k == 'PF': pf()
        elif k == 'BAR': a('s_barrier')
        elif k == 'R': rank(c)
        elif k == 'SCAN': scan()
        elif k == 'E': enc(c)
        elif k == 'W': wr(c)
        elif k == 'CO': copyout()
        elif k == 'PFE':
            a('s_mov_b64 exec, -1')
            a('v_cmpx_gt_u32 vcc, 1000, v0')
            pf(); a.wait_vm0()
        else: raise Exception(k)
    if cfg.diag:
        stamp(a, cfg, 4, VS)
        a.wait_vm0()
        stamp(a, cfg, 5, VS, True)
        stamp_out(a, cfg, 0, VS, 1, 32, 2, 60)
    a('k1_end:')
    a('s_endpgm')
    return a.text(), 104 if cfg.diag else 80, RECB + 65536 + cfg.k1pad

def k2(cfg):
    a = Asm()
    caps = [int(x) for x in str(cfg.caps).split('/')]
    rmap = [int(x) for x in str(cfg.rmap)[1:]]
    NR = len(caps); CAP = max(caps)
    RC = 2528; RM = 2 * RC
    BC = 0; WB = 1024
    CNT = [1280 + 2560*r for r in range(NR)]; C32 = 1280 + 2560*NR; M64 = C32 + 16*RC
    FB = M64 + 16*RM
    LDS = FB + 20480
    BK = C32; BKN = 63 * 1028; ZB = BK + 64 * 1028
    assert M64 <= 65535 and LDS <= 163840 and ZB % 16 == 0 and all(c % 4 == 0 and c <= 16 for c in caps)
    R = lambda j: 8 + 4*j
    ACC, AA0, AA1, GG, MO, DI = 72, 84, 88, 92, 96, 119
    VSO, VCN, VAM, VAC, ZR = 100, 101, 5, 6, 118
    T = 102
    VS = 120
    rmapn = [int(x) for x in str(cfg.rmapn or cfg.rmap)[1:]]
    cur = [rmap]
    rnd = lambda j: cur[0][j]
    INVS = f2h(1.0 / SCALE)
    a('s_cmp_ge_u32 s2, 256')
    a('s_cbranch_scc1 k2_end')
    a('s_load_dwordx2 s[4:5], s[0:1], 104')
    a('s_load_dwordx2 s[8:9], s[0:1], 0')
    a('s_load_dwordx2 s[56:57], s[0:1], 24')
    a('s_load_dwordx4 s[52:55], s[0:1], 56')
    a('s_load_dwordx2 s[12:13], s[0:1], 88')
    a('s_load_dwordx4 s[16:19], s[0:1], 72')
    if cfg.diag:
        a('v_writelane_b32 v121, s2, 0')
        a(f'v_mov_b32 v{VS}, 0')
    stamp(a, cfg, 0, VS)
    a('v_lshrrev_b32 v4, 6, v0')
    a('v_and_b32 v5, 63, v0')
    a('s_and_b32 s3, s2, 7')
    a('s_lshl_b32 s3, s3, 5')
    a('s_lshr_b32 s43, s2, 3')
    a('s_add_u32 s2, s43, s3')
    a('v_readfirstlane_b32 s3, v4')
    srd(a, 4, WSZ); srd(a, 8, 1280000); srd(a, 12, 1280004)
    a('v_lshlrev_b32 v6, 14, v5')
    a('s_lshl_b32 s42, s3, 8')
    a('s_add_u32 s42, s42, s2')
    a('s_lshl_b32 s42, s42, 2')
    a(f's_add_u32 s42, s42, {OFFB}')
    a('s_mov_b64 exec, 0xffff')
    a.wait_lg0()
    a.vmem(f'buffer_load_dword v{VCN}, v6, s[4:7], s42 offen', 'off')
    a('s_mov_b64 exec, -1')
    a('s_mul_i32 s2, s2, 5000')
    a(f's_mul_i32 s43, s43, {cfg.rot}')
    a('v_lshlrev_b32 v1, 2, v5')
    a(f'v_add_u32 v2, {BBASE}, v5')
    a('v_mov_b32 v3, 1028')
    a('v_lshl_add_u32 v7, v5, 4, v4')
    a(f'v_mul_u32_u24 v6, {STRIDE}, v7')
    a('v_add_u32 v7, s43, v7')
    a('v_and_b32 v7, 255, v7')
    a('v_mul_u32_u24 v5, 1028, v5')
    a('v_lshl_add_u32 v4, v4, 2, v5')
    a(f'v_mov_b32 v{ZR}, 0')
    a('s_cmp_ge_u32 s3, 8')
    a('s_cbranch_scc1 k2_N')
    save = (list(a.vm), list(a.lg))

    def fbadd(r, e4):
        a(f'v_lshlrev_b32 v{T}, 3, v{e4}')
        a(f'v_add_u32 v{T}, {FB}, v{T}')
        a(f'v_lshlrev_b32 v{T+5}, 16, v{r+2}')
        a(f'v_and_b32 v{T+1}, 0xffff0000, v{r+2}')
        for k in range(4):
            if k & 1: a(f'v_and_b32 v{T+2}, 0xffff0000, v{r+k//2}')
            else: a(f'v_lshlrev_b32 v{T+2}, 16, v{r+k//2}')
            a(f'v_mul_f32 v{T+3}, v{T+5}, v{T+2}')
            a(f'ds_add_f32 v{T}, v{T+3} offset:{8*k}')
            a(f'v_mul_f32 v{T+4}, v{T+1}, v{T+2}')
            a(f'ds_add_f32 v{T}, v{T+4} offset:{8*k+4}')
    def cpair(dst, d, t):
        a(f'v_cvt_f32_i32 v{dst}, v{d}')
        a(f'v_mul_f32 v{dst}, {INVS}, v{dst}')
        a(f'v_fma_f32 v{t}, v{dst}, v{dst}, -0.5')
        a(f'v_cvt_pk_bf16_f32 v{dst}, v{dst}, v{t}')
    def direct(d, b4):
        U = T + 8
        a(f'v_lshrrev_b32 v{T+5}, 7, v{d}')
        a(f'v_and_b32 v{T+5}, 0x1ff8, v{T+5}')
        a(f'v_mul_u32_u24 v{T+6}, 1250, v{b4}')
        a(f'v_add_u32 v{T+5}, v{T+5}, v{T+6}')
        a(f'buffer_load_dwordx2 v[{U}:{U+1}], v{T+5}, s[8:11], 0 offen')
        cpair(U + 2, d, T + 6)
        a(f'v_and_b32 v{T+5}, 0x3ff, v{d}')
        a(f'v_lshlrev_b32 v{T+5}, 2, v{T+5}')
        a('s_waitcnt vmcnt(0)')
        fbadd(U, T + 5)
    def ex(j): a(f's_bfm_b64 exec, s{20+j}, 0')
    def L(j):
        ex(j)
        t = ['vcc_lo', 'vcc_hi'][j & 1]
        a(f's_lshr_b32 {t}, s{36+j}, 2')
        if cfg.exp == 2: a.vmem(f'buffer_load_ubyte v{R(j)+3}, v1, s[4:7], s{36+j} offen{cfg.lf}', f'B{j}')
        elif cfg.exp == 0: a.vmem(f'buffer_load_ubyte v{R(j)+3}, v2, s[4:7], {t} offen{cfg.lf}', f'B{j}')
        a.vmem(f'buffer_load_dword v{R(j)+2}, v1, s[4:7], s{36+j} offen{cfg.lf}', f'L{j}')
    def SA(j):
        ex(j)
        a.wait(vm=[f'B{j}'])
        if cfg.exp:
            a.wait(vm=[f'L{j}'])
            a(f'v_lshrrev_b32 v{R(j)+3}, 10, v{R(j)+2}')
            a(f'v_xor_b32 v{R(j)+3}, v{R(j)+3}, v{R(j)+2}')
            a(f'v_and_b32 v{R(j)+3}, 255, v{R(j)+3}')
        a(f'v_lshlrev_b32 v{R(j)+3}, 2, v{R(j)+3}')
        a.lds(f'ds_add_rtn_u32 v{R(j)}, v{R(j)+3}, v3 offset:{BC}', f's{j}')
    def SW(j, cls):
        ex(j)
        a.wait(vm=[f'L{j}'], lg=[f's{j}'])
        a(f'v_cmp_le_u32 vcc, {BKN}, v{R(j)}')
        a(f's_cbranch_vccnz k2_so{cls}{j}')
        a(f'k2_sor{cls}{j}:')
        a.lds(f'ds_write_b32 v{R(j)}, v{R(j)+2} offset:{BK}')
        with a.ool():
            a(f'k2_so{cls}{j}:')
            a('s_and_saveexec_b64 s[0:1], vcc')
            direct(R(j) + 2, R(j) + 3)
            a('s_andn2_b64 exec, s[0:1], vcc')
            a(f's_branch k2_sor{cls}{j}')
    def DEC(order):
        a('s_mov_b64 exec, 0xffff')
        a(f'v_lshlrev_b32 v{T+1}, 2, v7')
        a.lds(f'ds_read_b32 v{T}, v{T+1} offset:{BC}', 'bc')
        a('s_mov_b64 exec, -1')
        n0 = cfg.rbn
        for j in order[:n0]: a.lds(f'ds_wrxchg_rtn_b32 v{R(j)+2}, v4, v{ZR} offset:{BK+64*j}', f'rb{j}')
        a('v_mul_u32_u24 v7, 5000, v7')
        a(f'v_mov_b32 v3, {RC}')
        a('v_mov_b32 v1, 0x1ff8')
        a('v_mov_b32 v2, 0xffc')
        for j in order: a(f'v_readlane_b32 s{36+j}, v7, {j}')
        a.wait(lg=['bc'])
        a(f'v_min_u32 v{T}, {BKN}, v{T}')
        a(f'v_mul_hi_u32_u24 v{T}, 4177985, v{T}')
        for j in order[n0:]: a.lds(f'ds_wrxchg_rtn_b32 v{R(j)+2}, v4, v{ZR} offset:{BK+64*j}', f'rb{j}')
        for j in order: a(f'v_readlane_b32 s{20+j}, v{T}, {j}')
    def G(j):
        ex(j)
        a.wait(lg=[f'rb{j}'])
        a(f'v_lshrrev_b32 v{T}, 7, v{R(j)+2}')
        a(f'v_and_b32 v{T}, v1, v{T}')
        a.vmem(f'buffer_load_dwordx2 v[{R(j)}:{R(j)+1}], v{T}, s[8:11], s{36+j} offen{cfg.gf}', f'G{j}')
        a(f'v_lshlrev_b32 v{T+1}, 2, v{R(j)+2}')
        a(f'v_and_b32 v{T+1}, v2, v{T+1}')
        a.lds(f'ds_add_rtn_u32 v{R(j)+3}, v{T+1}, v3 offset:{CNT[rnd(j)]}', f'r{j}')
        cpair(R(j) + 2, R(j) + 2, T + 2)
    def W(j, cls):
        ex(j)
        a.wait(vm=[f'G{j}'], lg=[f'r{j}'])
        a(f'v_cmp_le_u32 vcc, {caps[rnd(j)]*RC}, v{R(j)+3}')
        a(f'v_lshlrev_b32 v{T+6}, 1, v{R(j)+3}')
        a(f's_cbranch_vccnz k2_ov{cls}{j}')
        a(f'k2_ovr{cls}{j}:')
        a.lds(f'ds_write_b32 v{R(j)+3}, v{R(j)+2} offset:{C32}')
        a.lds(f'ds_write_b64 v{T+6}, v[{R(j)}:{R(j)+1}] offset:{M64}')
        with a.ool():
            a(f'k2_ov{cls}{j}:')
            a('s_and_saveexec_b64 s[0:1], vcc')
            a(f'v_mov_b32 v{T+5}, {2**32 // RC + 1}')
            a(f'v_mul_hi_u32 v{T+5}, v{T+5}, v{R(j)+3}')
            a(f'v_mul_u32_u24 v{T+5}, {RC}, v{T+5}')
            a(f'v_sub_u32 v{T+5}, v{R(j)+3}, v{T+5}')
            fbadd(R(j), T + 5)
            a('s_andn2_b64 exec, s[0:1], vcc')
            a(f's_branch k2_ovr{cls}{j}')
    def decode(cls, order):
        a.wait(vm=['off'])
        stamp(a, cfg, 1, VS)
        a('s_mov_b64 exec, 0xffff')
        a(f'v_and_b32 v{VSO}, 0xffff, v{VCN}')
        a(f'v_lshrrev_b32 v{VCN}, 16, v{VCN}')
        a(f'v_lshl_add_u32 v{VSO}, v{VSO}, 2, v6')
        a(f'v_min_u32 v{T}, 63, v{VCN}')
        for j in order:
            a(f'v_readlane_b32 s{36+j}, v{VSO}, {j}')
            a(f'v_readlane_b32 s{20+j}, v{T}, {j}')
    def LEFT(cls):
        a('s_mov_b64 exec, 0xffff')
        a(f'v_cmp_lt_u32 vcc, 63, v{VCN}')
        a(f's_cbranch_vccnz k2_left{cls}')
        a(f'k2_leftr{cls}:')
        with a.ool():
            a(f'k2_left{cls}:')
            a('s_mov_b64 s[36:37], vcc')
            a(f'k2_lj{cls}:')
            a('s_ff1_i32_b64 s38, s[36:37]')
            a('s_bitset0_b64 s[36:37], s38')
            a(f'v_readlane_b32 s39, v{VSO}, s38')
            a(f'v_readlane_b32 s40, v{VCN}, s38')
            a('s_nop 4')
            a('s_sub_u32 s40, s40, 63')
            a(f'k2_lc{cls}:')
            a('s_add_u32 s39, s39, 252')
            a('s_lshr_b32 s41, s39, 2')
            a('s_min_u32 s42, s40, 63')
            a('s_bfm_b64 exec, s42, 0')
            a(f'buffer_load_dword v{T+11}, v1, s[4:7], s39 offen')
            a(f'buffer_load_ubyte v{T+12}, v2, s[4:7], s41 offen')
            a('s_waitcnt vmcnt(0)')
            a(f'v_lshlrev_b32 v{T+12}, 2, v{T+12}')
            direct(T + 11, T + 12)
            a('s_sub_u32 s40, s40, s42')
            a('s_cmp_lg_u32 s40, 0')
            a(f's_cbranch_scc1 k2_lc{cls}')
            a('s_cmp_lg_u64 s[36:37], 0')
            a(f's_cbranch_scc1 k2_lj{cls}')
            a(f's_branch k2_leftr{cls}')
    def bar():
        a.wait_lg0(); a('s_barrier')
    def rnd2(x, y):
        a(f'v_cvt_pk_bf16_f32 v{y}, v{x}, v{y}')
        if x != y: a(f'v_lshlrev_b32 v{x}, 16, v{y}')
        a(f'v_and_b32 v{y}, 0xffff0000, v{y}')
    def rndl(l):
        l = list(l)
        while l:
            x = l.pop(0); y = l.pop(0) if l else x
            rnd2(x, y)
    MF = 'v_mfma_f32_4x4x4_16b_bf16'
    def WST(cls):
        if cls == 'R': return
        a('s_cmp_lg_u32 s3, 15')
        a('s_cbranch_scc1 k2_now2')
        a('s_mov_b32 exec_lo, -1')
        a('s_mov_b32 exec_hi, 0')
        a(f'v_and_b32 v{T}, 31, v0')
        a(f'v_lshlrev_b32 v{T}, 3, v{T}')
        a(f's_waitcnt vmcnt({len(a.vm) - 1 - a.vm.index("mo") if "mo" in a.vm else 63})')
        a(f'ds_write_b64 v{T}, v[{ACC}:{ACC+1}] offset:{WB}')
        a('k2_now2:')
    def PRE(ng):
        a('s_mov_b64 exec, -1')
        a(f'v_and_b32 v{T}, 12, v0')
        a(f'v_lshlrev_b32 v{T+1}, 1, v{T}')
        a(f'v_lshlrev_b32 v{T}, 2, v{T}')
        Wt = ACC
        for q, (ad, off) in enumerate(((T, 64), (T, 128), (T, 72), (T, 136), (T+1, 0), (T+1, 32))):
            a.lds(f'ds_read_b64_tr_b16 v[{Wt+2*q}:{Wt+2*q+1}], v{ad} offset:{WB+off}', f'w{q}')
        a.wait(vm=['dist'])
        a(f'v_lshlrev_b32 v{DI}, 16, v{DI}')
        X = list(range(T + 4, T + 12))
        for r, v in enumerate(X): a(f'v_subrev_f32 v{v}, {hex(CENTERS[r])}, v{DI}')
        rndl(X)
        for v in X: a(f'v_mul_f32 v{v}, v{v}, v{v}')
        rndl(X)
        for v in X: a(f'v_mul_f32 v{v}, 0xc1200000, v{v}')
        rndl(X)
        for v in X: a(f'v_mul_f32 v{v}, 0x3fb8aa3b, v{v}')
        for v in X: a(f'v_exp_f32 v{v}, v{v}')
        for q in range(4): a(f'v_cvt_pk_bf16_f32 v{T+q}, v{X[2*q]}, v{X[2*q+1]}')
        a.wait(lg=['w5'])
        for h in range(2):
            for q, D in enumerate((AA0, AA1, GG)):
                c = '0' if h == 0 else f'v[{D}:{D+3}]'
                a(f'{MF} v[{D}:{D+3}], v[{T+2*h}:{T+2*h+1}], v[{Wt+4*q+2*h}:{Wt+4*q+2*h+1}], {c}')
        a(f'v_and_b32 v{T+6}, 1, v0')
        a(f'v_mul_u32_u24 v{T+6}, 0xffff, v{T+6}')
        a(f'v_add_u32 v{T+6}, 1, v{T+6}')
        a(f'v_mul_u32_u24 v{T+6}, 0x3f80, v{T+6}')
        a(f'v_bfe_i32 v{T+7}, v0, 1, 1')
        a(f'v_and_b32 v{T+7}, v{T+7}, v{T+6}')
        a(f'v_xor_b32 v{T+6}, v{T+7}, v{T+6}')
        a.wait(vm=['mo'])
        a(f'v_mov_b32 v{T+8}, v{MO}')
        a(f'v_mov_b32 v{T+9}, v{MO+1}')
        a(f'{MF} v[{MO}:{MO+3}], v[{T+8}:{T+9}], v[{T+6}:{T+7}], 0')
        a(f'v_lshrrev_b32 v{T+4}, 4, v0')
        a(f'v_and_b32 v{T+5}, 3, v0')
        a(f'v_lshl_add_u32 v{T+4}, v{T+4}, 2, v{T+5}')
        a(f'v_bfe_u32 v{T+5}, v0, 2, 2')
        a(f'v_mul_u32_u24 v{T+5}, {RC//4}, v{T+5}')
        a(f'v_add_u32 v{T+4}, v{T+4}, v{T+5}')
        a(f'v_lshlrev_b32 v{VAM}, 3, v{T+4}')
        a(f'v_add_u32 v{VAM}, {M64}, v{VAM}')
        a(f'v_and_b32 v{T+4}, -2, v{T+4}')
        a(f'v_lshlrev_b32 v{VAC}, 2, v{T+4}')
        for i in range(ng): a(f'v_add_f32 v{AA1+i}, v{AA1+i}, v{AA1+i}')
        rndl(range(GG, GG + ng))
    def RO(rd, ng, bufs, first, last):
        a('s_mov_b64 exec, -1')
        its = [(i, g) for g in range(caps[rd] // 4) for i in range(ng)]
        nb = len(bufs)
        def rdq(q):
            i, g = its[q]; b = bufs[q % nb]
            a.lds(f'ds_read_b64_tr_b16 v[{b}:{b+1}], v{VAC} offset:{C32 + 1024*i + 4*RC*g}', f'a{q}')
            a.lds(f'ds_read_b64_tr_b16 v[{b+2}:{b+3}], v{VAM} offset:{2048*i + 4*RM*g}', f'b{q}')
        D = min(nb - 1, cfg.rod, len(its))
        for q in range(D): rdq(q)
        if not last:
            a(f'v_lshrrev_b32 v{T}, 6, v0')
            a(f'v_and_b32 v{T+1}, 3, v0')
            a(f'v_lshl_add_u32 v{T}, v{T}, 2, v{T+1}')
            a(f'v_bfe_u32 v{T+1}, v0, 2, 4')
            a(f'v_mul_u32_u24 v{T+1}, {RC}, v{T+1}')
            a(f'v_min_u32 v{T+2}, {RC//16 - 1 - 128}, v{T}')
            a(f'v_lshl_add_u32 v{T}, v{T}, 4, v{T+1}')
            a(f'v_lshl_add_u32 v{T+2}, v{T+2}, 4, v{T+1}')
            for k in range(4): a(f'v_mov_b32 v{T+4+k}, 0')
        for q, (i, g) in enumerate(its):
            b = bufs[q % nb]
            if q + D < len(its): rdq(q + D)
            if q + D == len(its) - 1 or (q == 0 and D == len(its)):
                if last:
                    for k in range(ng): a.lds(f'ds_read_b64 v[{T+2*k}:{T+2*k+1}], v{VSO} offset:{8192*k}', f'f{k}')
                else:
                    for k in range(ng): a.lds(f'ds_write_b128 v{T+2 if k == 2 else T}, v[{T+4}:{T+7}] offset:{C32 + 1024*k}')
            a.wait(lg=[f'b{q}'])
            c = '0' if (first and g == 0) else f'v[{ACC+4*i}:{ACC+4*i+3}]'
            a(f'{MF} v[{ACC+4*i}:{ACC+4*i+3}], v[{b}:{b+1}], v[{b+2}:{b+3}], {c}')
    WD = WU = None
    def FINA(r0, r1):
        a('s_mov_b64 exec, -1')
        a(f'v_and_b32 v{T}, 12, v0')
        a(f'v_lshlrev_b32 v{T}, 1, v{T}')
        a.lds(f'ds_read_b64_tr_b16 v[{r0+2}:{r0+3}], v{T} offset:{WB+192}', 'wd')
        a.lds(f'ds_read_b64_tr_b16 v[{r1+2}:{r1+3}], v{T} offset:{WB+224}', 'wu')
        a(f'v_lshlrev_b32 v{VSO}, 3, v0')
        a(f'v_add_u32 v{VSO}, {FB}, v{VSO}')
        a(f'v_lshlrev_b32 v{VCN}, 1, v0')
        a('s_add_u32 s18, s2, 4096')
        a('s_mov_b32 s16, 0xf0f0f0f0')
        a('s_mov_b32 s17, 0xf0f0f0f0')
        a.wait(lg=['wu'])
        for r in (r0, r1):
            a(f'v_lshlrev_b32 v{r}, 16, v{r+2}')
            a(f'v_and_b32 v{r+1}, 0xffff0000, v{r+2}')
            a(f'v_lshlrev_b32 v{r+2}, 16, v{r+3}')
            a(f'v_and_b32 v{r+3}, 0xffff0000, v{r+3}')
    def FIN(ng, r0, r1):
        GR = range(ng)
        qp = lambda k: f'quad_perm:[{k},{k},{k},{k}] row_mask:0xf bank_mask:0xf'
        for i in GR:
            for l in range(2): a(f'v_cndmask_b32 v{ACC+4*i+l}, v{ACC+4*i+l}, v{ACC+4*i+2+l}, s[16:17]')
        a.wait(lg=[f'f{ng-1}'])
        for i in GR:
            for l in range(2): a(f'v_add_f32 v{ACC+4*i+l}, v{ACC+4*i+l}, v{T+2*i+l}')
        for k in range(4):
            for i in GR:
                for l in range(2):
                    a(f'{"v_mul_f32_dpp" if k == 0 else "v_fmac_f32_dpp"} v{ACC+4*i+2+l}, v{ACC+4*i+l}, v{r0+k} {qp(k)}')
        for i in GR: a(f'v_mul_f32 v{T+i}, v{AA0+i}, v{ACC+4*i+2}')
        for i in GR: a(f'v_fmac_f32 v{T+i}, v{AA1+i}, v{ACC+4*i+3}')
        rndl(T + i for i in GR)
        U = T + 4
        for k in range(4):
            for i in GR: a(f'{"v_mul_f32_dpp" if k == 0 else "v_fmac_f32_dpp"} v{U+i}, v{T+i}, v{r1+k} {qp(k)}')
        rndl(U + i for i in GR)
        for i in GR: a(f'v_mul_f32 v{U+i}, v{U+i}, v{GG+i}')
        rndl(U + i for i in GR)
        for i in GR: a(f'v_add_f32 v{U+i}, v{U+i}, v{MO+i}')
        a(f'v_cvt_pk_bf16_f32 v{U}, v{U}, v{U+1}')
        a.vmem(f'buffer_store_short v{U}, v{VCN}, s[12:15], s2 offen', 'st')
        a.vmem(f'buffer_store_short_d16_hi v{U}, v{VCN}, s[12:15], s2 offen offset:2048', 'st')
        if ng == 3:
            a(f'v_cvt_pk_bf16_f32 v{U+2}, v{U+2}, v{U+2}')
            a('v_cmpx_gt_u32 vcc, 452, v0')
            a.vmem(f'buffer_store_short v{U+2}, v{VCN}, s[12:15], s18 offen', 'st')
    def LD(cls):
        a('s_mov_b64 exec, -1')
        a(f'v_and_b32 v{T}, 3, v0')
        a(f'v_lshrrev_b32 v{T+1}, 2, v0')
        a(f'v_lshl_add_u32 v{T}, v{T}, 8, v{T+1}')
        a(f'v_min_u32 v{T}, 624, v{T}')
        a('s_lshr_b32 s0, s2, 2')
        a(f'v_lshl_add_u32 v{T+1}, v{T}, 1, s0')
        a.vmem(f'global_load_ushort v{DI}, v{T+1}, s[56:57]', 'dist')
        a(f'v_lshlrev_b32 v{T}, 3, v{T}')
        a.vmem(f'buffer_load_dwordx2 v[{MO}:{MO+1}], v{T}, s[8:11], s2 offen', 'mo')
        if cls == 'N':
            a('s_cmp_lg_u32 s3, 15')
            a('s_cbranch_scc1 k2_now')
            a(f'v_lshlrev_b32 v{T}, 1, v1')
            a('s_mov_b32 exec_hi, 0')
            for msk, p, o in ((0xff, 52, 0), (0xffff00, 54, -64), (0xf000000, 16, -192), (0xf0000000, 18, -224)):
                a(f's_mov_b32 exec_lo, {hex(msk)}')
                a(f'global_load_dwordx2 v[{ACC}:{ACC+1}], v{T}, s[{p}:{p+1}] offset:{o}')
            a('k2_now:')
    def ZM(lo, hi):
        a('s_mov_b64 exec, -1')
        a(f'v_lshlrev_b32 v{T}, 4, v0')
        a(f'v_add_u32 v{T}, {lo}, v{T}')
        for k in range(4): a(f'v_mov_b32 v{T+4+k}, 0')
        n = (hi - lo) // 16
        for k in range((n + 1023) // 1024):
            if n - 1024*k < 1024: a(f'v_cmpx_gt_u32 vcc, {n - 1024*k}, v0')
            a.lds(f'ds_write_b128 v{T}, v[{T+4}:{T+7}] offset:{16384*k}')

    def body(cls):
        isR = cls == 'R'; NG = 3 if isR else 2
        cur[0] = rmap if isR else rmapn
        if cfg.ld0:
            LD(cls); a('s_mov_b64 exec, -1')
        a(f'v_lshlrev_b32 v{T+1}, 2, v0')
        if isR:
            a('v_cmpx_gt_u32 vcc, 256, v0')
            a(f'v_subrev_u32 v{T}, s43, v0')
            a(f'v_and_b32 v{T}, 255, v{T}')
            a(f'v_lshlrev_b32 v{T}, 2, v{T}')
            a.lds(f'ds_write_b32 v{T+1}, v{T} offset:{BC}')
            a('s_mov_b64 exec, -1')
        else:
            a.lds(f'ds_write_b32 v5, v{ZR} offset:{BK+1024}')
            a('v_cmpx_gt_u32 vcc, 640, v0')
        for r in range(NR): a.lds(f'ds_write_b32 v{T+1}, v{T+1} offset:{CNT[r]}')
        ZM(FB, LDS)
        bar()
        if cfg.zm0: ZM(ZB, FB)
        ops = expand((cfg.srt if isR else cfg.snt or cfg.srt) + ' ' + (cfg.sr if isR else cfg.sn or cfg.sr))
        order = [j for k, j in ops if k == 'L']
        assert sorted(order) == list(range(16))
        gorder = [j for k, j in ops if k == 'G']
        for kk in ('G', 'W', 'SA', 'SW'): assert sorted(j for k, j in ops if k == kk) == list(range(16)), kk
        done = set(); nl = 0; ng = 0; seen = {'LD'} if cfg.ld0 else set(); fr = None; left = False
        nro = [j for k, j in ops if k == 'RO']
        assert nro == list(range(NR))
        for k, j in ops:
            if k == 'L':
                if nl == 0: decode(cls, order)
                L(j); nl += 1
            elif k == 'LEFT': assert nl == 16; LEFT(cls)
            elif k == 'G': G(j); ng += 1
            elif k == 'SA': SA(j)
            elif k == 'SW': SW(j, cls)
            elif k == 'DEC': assert 'LEFT' in seen; DEC(gorder)
            elif k == 'W': assert 'ZM' in seen or cfg.zm0; W(j, cls); done.add(j)
            elif k == 'ZM': ZM(ZB, FB)
            elif k == 'WST': assert 'LD' in seen and nl > 0; WST(cls); seen.discard('BAR')
            elif k == 'LD': assert 'DEC' not in seen; LD(cls)
            elif k == 'PRE': assert 'WST' in seen and 'BAR' in seen and nl > 0; PRE(NG)
            elif k == 'BAR': bar()
            elif k == 'SB': a('s_barrier')
            elif k == 'ST': stamp(a, cfg, j, VS)
            elif k == 'PRIO': a(f's_setprio {j}')
            elif k == 'RO':
                assert 'PRE' in seen and (j < NR - 1 or fr)
                assert all(x in done for x in range(16) if rnd(x) <= j)
                RO(j, NG, [R(x) for x in sorted(done) if R(x) not in (fr or ())] + [T + 8, T + 12], j == 0, j == NR - 1)
            elif k == 'FINA':
                assert 'LEFT' in seen
                fr = [R(x) for x in sorted(done)][:2]; FINA(*fr)
            elif k == 'FIN': FIN(NG, *fr)
            else: raise Exception(k)
            seen.add(k)
        if cfg.diag:
            a.wait_vm0()
            stamp(a, cfg, 9, VS, True)
            a('v_readlane_b32 s2, v121, 0')
            stamp_out(a, cfg, 1, VS, 1, 4, 2, 98)
        a('s_endpgm')
    body('R')
    a('k2_N:')
    a.vm, a.lg = save
    body('N')
    a('k2_end:')
    a('s_endpgm')
    return a.text(), 124 if cfg.diag else 120, LDS

def desc(name, vg):
    return f'''.amdhsa_kernel {name}
  .amdhsa_next_free_vgpr {vg}
  .amdhsa_next_free_sgpr 102
  .amdhsa_accum_offset {(vg+3)//4*4}
  .amdhsa_group_segment_fixed_size 0
  .amdhsa_kernarg_size 112
  .amdhsa_user_sgpr_count 2
  .amdhsa_user_sgpr_kernarg_segment_ptr 1
  .amdhsa_system_sgpr_workgroup_id_x 1
.end_amdhsa_kernel
'''

def build(cfg):
    t1, v1, l1 = k1(cfg); t2, v2, l2 = k2(cfg)
    n1, n2 = 'gemnet_bin_kernel', NAME + '_kernel'
    s = HDR
    ks = [(n1, t1, v1, l1), (n2, t2, v2, l2)]
    em = '; @launch kernel=empty_kernel grid=(1,1,1) block=(64,1,1) lds=0\n'
    s += em * cfg.epre
    for r in range(cfg.rep):
        s += f'; @launch kernel={n1} grid=(256,1,1) block=(1024,1,1) lds={l1}\n'
        s += f'; @launch kernel={n2} grid=(256,1,1) block=(1024,1,1) lds={l2}\n' * cfg.rep2
    s += em * cfg.epost
    etext = '    s_endpgm\n'
    if cfg.probe:
        etext = f'''    s_cmp_ge_u32 s2, 1
    s_cbranch_scc1 pr_end
    s_load_dwordx2 s[4:5], s[0:1], 104
    s_waitcnt lgkmcnt(0)
    s_add_u32 s4, s4, {DIAGB + cfg.probek * 262144}
    s_addc_u32 s5, s5, 0
    s_load_dword s6, s[4:5], {cfg.probes * 4}
    s_mov_b32 s7, 20000
pr_l:
    s_memrealtime s[8:9]
    s_waitcnt lgkmcnt(0)
    s_sub_u32 s8, s8, s6
    s_sub_u32 s7, s7, 1
    s_cmp_eq_u32 s7, 0
    s_cbranch_scc1 pr_end
    s_cmp_lt_u32 s8, {cfg.probe}
    s_cbranch_scc1 pr_l
pr_end:
    s_endpgm
'''
    if cfg.epre or cfg.epost: ks.append(('empty_kernel', etext, 8, 0))
    s += '.amdgcn_target "amdgcn-amd-amdhsa--gfx950"\n.text\n'
    for n, t, v, l in ks:
        s += f'.globl {n}\n.p2align 8\n.type {n},@function\n{n}:\n{t}'
    s += '.section .rodata,"a"\n'
    for n, t, v, l in ks: s += '.p2align 6\n' + desc(n, v)
    return s

if __name__ == '__main__':
    ap = argparse.ArgumentParser()
    ap.add_argument('-o', default='cdna_kernels/' + NAME + '.s')
    ap.add_argument('kv', nargs='*')
    x = ap.parse_args()
    cfg = Cfg(); cfg.probe = 0; cfg.probek = 0; cfg.probes = 0; cfg.epre = 0; cfg.epost = 0; cfg.rep = 1; cfg.rep2 = 1
    cfg.caps = '16/16'; cfg.rmap = 'r0000000011111111'; cfg.rod = 5; cfg.lf = ''; cfg.gl = 0
    cfg.exp = 0; cfg.k1pad = 0; cfg.rot = 0; cfg.rbn = 8
    cfg.sa = 'O0-4 BAR I,A0-4 R0-4 SCAN E,W0-4 CO'
    cfg.zm0 = 0; cfg.rmapn = 0; cfg.snt = ''; cfg.sn = ''; cfg.rod = 7
    cfg.gf = ''; cfg.ld0 = 0
    cfg.ld0 = 1; cfg.rot = 1
    cfg.srt = 'L0-15 LEFT ST2 SA0-1 SA2-15,SW0-13 WST SW14-15 BAR ST3 DEC'
    cfg.sr = 'G0-2 ZM BAR G3 PRE W0-3,G4-7 SB G8 W4-7 BAR ST5 RO0 G9-10 BAR ST6 G11-12 W8-10,G13-15 FINA W11-15 BAR ST7 RO1 ST8 FIN'
    cfg.sn = 'G0-2 ZM BAR G3 PRE W0-3,G4-7 SB G8 W4-7 BAR ST5 G9-10 RO0 BAR ST6 G11-12 W8-10,G13-15 FINA W11-15 BAR ST7 RO1 ST8 FIN'
    for kv in x.kv:
        k, v = kv.split('=', 1)
        try: v = int(v, 0)
        except ValueError: v = v.replace('_', ' ')
        setattr(cfg, k, v)
    open(x.o, 'w').write(build(cfg))
```

```python
import sys, argparse
from asmlib import Asm

NAME = 'standalone__molecular_angular_gemnet__graph'
HDR = open('cdna_kernels/' + NAME + '.s.ref').read().split('; Override launch')[0]

STRIDE = 40448
DOFF = 65536
BBASE = 256 * STRIDE
OFFB = DOFF + BBASE + 64 * STRIDE
FLB = OFFB + 262144
SCALE = 2145386496.0
import struct
def f2h(x): return hex(struct.unpack('<I', struct.pack('<f', x))[0])
DIAGB = 64 << 20
WSZ = 0x10000000
CENTERS = [0x00000000, 0x3e120000, 0x3e920000, 0x3edb0000, 0x3f120000, 0x3f370000, 0x3f5b0000, 0x3f800000]

class Cfg:
    nB = 8; n1 = 8; cap = 16; diag = False; sched = 'a'; ldnt = ' nt'; stf = ' sc1'; wsoff = 0

def expand(sched):
    import re
    out = []
    for t in sched.split():
        parts = t.split(',')
        seqs = []
        for p in parts:
            m = re.fullmatch(r'([A-Z]+)(?:(\d+)(?:-(\d+))?)?', p)
            k, lo, hi = m.groups()
            seqs.append((k, None if lo is None else list(range(int(lo), int(hi or lo) + 1))))
        last = seqs[-1][1]
        if last is None: out.append((seqs[0][0], None)); continue
        n = max(len(q or last) for _, q in seqs)
        for i in range(n):
            for k, q in seqs:
                q = q or last
                if i < len(q): out.append((k, q[i]))
    return out

def srd(a, r, size):
    a(f's_mov_b32 s{r+2}, {size}')
    a(f's_mov_b32 s{r+3}, 0x20000')

def stamp(a, cfg, k, vs, clk=False):
    if not cfg.diag: return
    a('s_memrealtime s[100:101]')
    a.wait_lg0()
    a(f'v_writelane_b32 v{vs}, s100, {k}')
    if k == 0 or clk:
        a('s_memtime s[100:101]')
        a.wait_lg0()
        a(f'v_writelane_b32 v{vs}, s100, {14 if k == 0 else 15}')

def stamp_out(a, cfg, kern, vs, vt, wsrd, swg):
    if not cfg.diag: return
    a('s_mov_b64 exec, 0xffff')
    a(f'v_lshrrev_b32 v{vt}, 6, v0')
    a(f'v_lshlrev_b32 v{vt}, 6, v{vt}')
    a(f'v_and_b32 v{vt+1}, 63, v0')
    a(f'v_lshl_add_u32 v{vt}, v{vt+1}, 2, v{vt}')
    a(f's_lshl_b32 s100, s{swg}, 10')
    a(f's_add_u32 s100, s100, {DIAGB + kern * 262144}')
    a(f'buffer_store_dword v{vs}, v{vt}, s[{wsrd}:{wsrd+3}], s100 offen')

def k2(cfg):
    a = Asm()
    caps = [int(x) for x in str(cfg.caps).split('/')]
    rmap = [int(x) for x in str(cfg.rmap)[1:]]
    NR = len(caps); CAP = max(caps)
    RC = 2528; RM = 2 * RC
    BC = 0; WB = 1024
    CNT = [1280 + 2560*r for r in range(NR)]; C32 = 1280 + 2560*NR; M64 = C32 + 16*RC
    FB = M64 + 16*RM
    LDS = FB + 20480
    BK = C32; BKN = 63 * 1028; ZB = BK + 64 * 1028
    assert M64 <= 65535 and LDS <= 163840 and ZB % 16 == 0 and all(c % 4 == 0 and c <= 16 for c in caps)
    R = lambda j: 8 + 4*j
    ACC, AA0, AA1, GG, MO, DI = 72, 84, 88, 92, 96, 119
    VSO, VCN, VAM, VAC, ZR = 100, 101, 5, 119, 118
    T = 102
    VS = 120
    rmapn = [int(x) for x in str(cfg.rmapn or cfg.rmap)[1:]]
    cur = [rmap]
    rnd = lambda j: cur[0][j]
    INVS = f2h(1.0 / SCALE)
    def fbadd(r, e4):
        a(f'v_lshlrev_b32 v{T}, 3, v{e4}')
        a(f'v_add_u32 v{T}, {FB}, v{T}')
        a(f'v_lshlrev_b32 v{T+5}, 16, v{r+2}')
        a(f'v_and_b32 v{T+1}, 0xffff0000, v{r+2}')
        for k in range(4):
            if k & 1: a(f'v_and_b32 v{T+2}, 0xffff0000, v{r+k//2}')
            else: a(f'v_lshlrev_b32 v{T+2}, 16, v{r+k//2}')
            a(f'v_mul_f32 v{T+3}, v{T+5}, v{T+2}')
            a(f'ds_add_f32 v{T}, v{T+3} offset:{8*k}')
            a(f'v_mul_f32 v{T+4}, v{T+1}, v{T+2}')
            a(f'ds_add_f32 v{T}, v{T+4} offset:{8*k+4}')
    def cpair(dst, d, t):
        a(f'v_cvt_f32_i32 v{dst}, v{d}')
        a(f'v_mul_f32 v{dst}, {INVS}, v{dst}')
        a(f'v_fma_f32 v{t}, v{dst}, v{dst}, -0.5')
        a(f'v_cvt_pk_bf16_f32 v{dst}, v{dst}, v{t}')
    def direct(d, b4):
        U = T + 8
        a(f'v_lshrrev_b32 v{T+5}, 7, v{d}')
        a(f'v_and_b32 v{T+5}, 0x1ff8, v{T+5}')
        a(f'v_mul_u32_u24 v{T+6}, 1250, v{b4}')
        a(f'v_add_u32 v{T+5}, v{T+5}, v{T+6}')
        a(f'buffer_load_dwordx2 v[{U}:{U+1}], v{T+5}, s[8:11], 0 offen')
        cpair(U + 2, d, T + 6)
        a(f'v_and_b32 v{T+5}, 0x3ff, v{d}')
        a(f'v_lshlrev_b32 v{T+5}, 2, v{T+5}')
        a('s_waitcnt vmcnt(0)')
        fbadd(U, T + 5)
    def ex(j): a(f's_bfm_b64 exec, s{20+j}, 0')
    def L(j):
        ex(j)
        t = ['vcc_lo', 'vcc_hi'][j & 1]
        a(f's_lshr_b32 {t}, s{36+j}, 2')
        if cfg.exp == 2: a.vmem(f'buffer_load_ubyte v{R(j)+3}, v1, s[4:7], s{36+j} offen{cfg.lf}', f'B{j}')
        elif cfg.exp == 0: a.vmem(f'buffer_load_ubyte v{R(j)+3}, v2, s[4:7], {t} offen{cfg.lf}', f'B{j}')
        a.vmem(f'buffer_load_dword v{R(j)+2}, v1, s[4:7], s{36+j} offen{cfg.lf}', f'L{j}')
    def SA(j):
        ex(j)
        a.wait(vm=[f'B{j}'])
        if cfg.exp:
            a.wait(vm=[f'L{j}'])
            a(f'v_lshrrev_b32 v{R(j)+3}, 10, v{R(j)+2}')
            a(f'v_xor_b32 v{R(j)+3}, v{R(j)+3}, v{R(j)+2}')
            a(f'v_and_b32 v{R(j)+3}, 255, v{R(j)+3}')
        a(f'v_lshlrev_b32 v{R(j)+3}, 2, v{R(j)+3}')
        a.lds(f'ds_add_rtn_u32 v{R(j)}, v{R(j)+3}, v3 offset:{BC}', f's{j}')
    def SW(j, cls):
        ex(j)
        a.wait(vm=[f'L{j}'], lg=[f's{j}'])
        a(f'v_cmp_le_u32 vcc, {BKN}, v{R(j)}')
        a(f's_cbranch_vccnz k2_so{cls}{j}')
        a(f'k2_sor{cls}{j}:')
        a.lds(f'ds_write_b32 v{R(j)}, v{R(j)+2} offset:{BK}')
        with a.ool():
            a(f'k2_so{cls}{j}:')
            a('s_and_saveexec_b64 s[0:1], vcc')
            direct(R(j) + 2, R(j) + 3)
            a('s_andn2_b64 exec, s[0:1], vcc')
            a(f's_branch k2_sor{cls}{j}')
    def DEC(order):
        a('s_mov_b64 exec, 0xffff')
        a(f'v_lshlrev_b32 v{T+1}, 2, v7')
        a.lds(f'ds_read_b32 v{T}, v{T+1} offset:{BC}', 'bc')
        a('s_mov_b64 exec, -1')
        n0 = cfg.rbn
        for j in order[:n0]: a.lds(f'ds_wrxchg_rtn_b32 v{R(j)+2}, v4, v{ZR} offset:{BK+64*j}', f'rb{j}')
        a('v_mul_u32_u24 v7, 5000, v7')
        a(f'v_mov_b32 v3, {RC}')
        a('v_mov_b32 v1, 0x1ff8')
        a('v_mov_b32 v2, 0xffc')
        for j in order: a(f'v_readlane_b32 s{36+j}, v7, {j}')
        a.wait(lg=['bc'])
        a(f'v_min_u32 v{T}, {BKN}, v{T}')
        a(f'v_mul_hi_u32_u24 v{T}, 4177985, v{T}')
        for j in order[n0:]: a.lds(f'ds_wrxchg_rtn_b32 v{R(j)+2}, v4, v{ZR} offset:{BK+64*j}', f'rb{j}')
        for j in order: a(f'v_readlane_b32 s{20+j}, v{T}, {j}')
    def G(j):
        ex(j)
        a.wait(lg=[f'rb{j}'])
        a(f'v_lshrrev_b32 v{T}, 7, v{R(j)+2}')
        a(f'v_and_b32 v{T}, v1, v{T}')
        a.vmem(f'buffer_load_dwordx2 v[{R(j)}:{R(j)+1}], v{T}, s[8:11], s{36+j} offen{cfg.gf}', f'G{j}')
        a(f'v_lshlrev_b32 v{T+1}, 2, v{R(j)+2}')
        a(f'v_and_b32 v{T+1}, v2, v{T+1}')
        a.lds(f'ds_add_rtn_u32 v{R(j)+3}, v{T+1}, v3 offset:{CNT[rnd(j)]}', f'r{j}')
        cpair(R(j) + 2, R(j) + 2, T + 2)
    def W(j, cls):
        ex(j)
        a.wait(vm=[f'G{j}'], lg=[f'r{j}'])
        a(f'v_cmp_le_u32 vcc, {caps[rnd(j)]*RC}, v{R(j)+3}')
        a(f'v_lshlrev_b32 v{T+6}, 1, v{R(j)+3}')
        a(f's_cbranch_vccnz k2_ov{cls}{j}')
        a(f'k2_ovr{cls}{j}:')
        a.lds(f'ds_write_b32 v{R(j)+3}, v{R(j)+2} offset:{C32}')
        a.lds(f'ds_write_b64 v{T+6}, v[{R(j)}:{R(j)+1}] offset:{M64}')
        with a.ool():
            a(f'k2_ov{cls}{j}:')
            a('s_and_saveexec_b64 s[0:1], vcc')
            a(f'v_mov_b32 v{T+5}, {2**32 // RC + 1}')
            a(f'v_mul_hi_u32 v{T+5}, v{T+5}, v{R(j)+3}')
            a(f'v_mul_u32_u24 v{T+5}, {RC}, v{T+5}')
            a(f'v_sub_u32 v{T+5}, v{R(j)+3}, v{T+5}')
            fbadd(R(j), T + 5)
            a('s_andn2_b64 exec, s[0:1], vcc')
            a(f's_branch k2_ovr{cls}{j}')
    def decode(cls, order):
        if not cfg.poll0: POLL()
        a('s_mov_b64 exec, 0xffff')
        a.wait_vm0()
        a(f'v_cmp_eq_u32 vcc, 0, v{VCN}')
        a(f's_cbranch_vccnz k2_pwait{cls}')
        a(f'k2_pok{cls}:')
        with a.ool():
            a(f'k2_pwait{cls}:')
            a('s_mov_b64 exec, vcc')
            a('s_sub_u32 s81, s81, 1')
            a('s_cbranch_scc1 k2_end')
            if cfg.slp: a(f's_sleep {cfg.slp}')
            a(f'buffer_load_dword v{VCN}, v{FLG}, s[4:7], s79 offen sc1')
            a('s_waitcnt vmcnt(0)')
            a(f'v_cmp_eq_u32 vcc, 0, v{VCN}')
            a(f's_cbranch_vccnz k2_pwait{cls}')
            a('s_mov_b64 exec, 0xffff')
            a(f's_branch k2_pok{cls}')
        stamp(a, cfg, 1, VS)
        a(f'v_and_b32 v{VSO}, 0xffff, v{VCN}')
        a(f'v_lshrrev_b32 v{VCN}, 16, v{VCN}')
        a(f'v_lshl_add_u32 v{VSO}, v{VSO}, 2, v6')
        a(f'v_min_u32 v{T}, 63, v{VCN}')
        for j in order:
            a(f'v_readlane_b32 s{36+j}, v{VSO}, {j}')
            a(f'v_readlane_b32 s{20+j}, v{T}, {j}')
        if cfg.pbar: a('s_barrier')
    def LEFT(cls):
        a('s_mov_b64 exec, 0xffff')
        a(f'v_cmp_lt_u32 vcc, 63, v{VCN}')
        a(f's_cbranch_vccnz k2_left{cls}')
        a(f'k2_leftr{cls}:')
        with a.ool():
            a(f'k2_left{cls}:')
            a('s_mov_b64 s[36:37], vcc')
            a(f'k2_lj{cls}:')
            a('s_ff1_i32_b64 s38, s[36:37]')
            a('s_bitset0_b64 s[36:37], s38')
            a(f'v_readlane_b32 s39, v{VSO}, s38')
            a(f'v_readlane_b32 s40, v{VCN}, s38')
            a('s_nop 4')
            a('s_sub_u32 s40, s40, 63')
            a(f'k2_lc{cls}:')
            a('s_add_u32 s39, s39, 252')
            a('s_lshr_b32 s41, s39, 2')
            a('s_min_u32 s42, s40, 63')
            a('s_bfm_b64 exec, s42, 0')
            a(f'buffer_load_dword v{T+11}, v1, s[4:7], s39 offen sc1')
            a(f'buffer_load_ubyte v{T+12}, v2, s[4:7], s41 offen sc1')
            a('s_waitcnt vmcnt(0)')
            a(f'v_lshlrev_b32 v{T+12}, 2, v{T+12}')
            direct(T + 11, T + 12)
            a('s_sub_u32 s40, s40, s42')
            a('s_cmp_lg_u32 s40, 0')
            a(f's_cbranch_scc1 k2_lc{cls}')
            a('s_cmp_lg_u64 s[36:37], 0')
            a(f's_cbranch_scc1 k2_lj{cls}')
            a(f's_branch k2_leftr{cls}')
    def bar():
        a.wait_lg0(); a('s_barrier')
    def rnd2(x, y):
        a(f'v_cvt_pk_bf16_f32 v{y}, v{x}, v{y}')
        if x != y: a(f'v_lshlrev_b32 v{x}, 16, v{y}')
        a(f'v_and_b32 v{y}, 0xffff0000, v{y}')
    def rndl(l):
        l = list(l)
        while l:
            x = l.pop(0); y = l.pop(0) if l else x
            rnd2(x, y)
    MF = 'v_mfma_f32_4x4x4_16b_bf16'
    def WST():
        a('s_cmp_lg_u32 s3, 15')
        a('s_cbranch_scc1 k2_now2')
        a('s_mov_b32 exec_lo, -1')
        a('s_mov_b32 exec_hi, 0')
        a(f'v_and_b32 v{T}, 31, v0')
        a(f'v_lshlrev_b32 v{T}, 3, v{T}')
        a(f's_waitcnt vmcnt({len(a.vm) - 1 - a.vm.index("mo") if "mo" in a.vm else 63})')
        a(f'ds_write_b64 v{T}, v[{WTS}:{WTS+1}] offset:{WB}')
        a('k2_now2:')
    def PRE(ng):
        a('s_mov_b64 exec, -1')
        a(f'v_and_b32 v{T}, 12, v0')
        a(f'v_lshlrev_b32 v{T+1}, 1, v{T}')
        a(f'v_lshlrev_b32 v{T}, 2, v{T}')
        Wt = ACC
        for q, (ad, off) in enumerate(((T, 64), (T, 128), (T, 72), (T, 136), (T+1, 0), (T+1, 32))):
            a.lds(f'ds_read_b64_tr_b16 v[{Wt+2*q}:{Wt+2*q+1}], v{ad} offset:{WB+off}', f'w{q}')
        a.wait(vm=['dist'])
        a(f'v_lshlrev_b32 v{DI}, 16, v{DI}')
        X = list(range(T + 4, T + 12))
        for r, v in enumerate(X): a(f'v_subrev_f32 v{v}, {hex(CENTERS[r])}, v{DI}')
        rndl(X)
        for v in X: a(f'v_mul_f32 v{v}, v{v}, v{v}')
        rndl(X)
        for v in X: a(f'v_mul_f32 v{v}, 0xc1200000, v{v}')
        rndl(X)
        for v in X: a(f'v_mul_f32 v{v}, 0x3fb8aa3b, v{v}')
        for v in X: a(f'v_exp_f32 v{v}, v{v}')
        for q in range(4): a(f'v_cvt_pk_bf16_f32 v{T+q}, v{X[2*q]}, v{X[2*q+1]}')
        a.wait(lg=['w5'])
        for h in range(2):
            for q, D in enumerate((AA0, AA1, GG)):
                c = '0' if h == 0 else f'v[{D}:{D+3}]'
                a(f'{MF} v[{D}:{D+3}], v[{T+2*h}:{T+2*h+1}], v[{Wt+4*q+2*h}:{Wt+4*q+2*h+1}], {c}')
        a(f'v_and_b32 v{T+6}, 1, v0')
        a(f'v_mul_u32_u24 v{T+6}, 0xffff, v{T+6}')
        a(f'v_add_u32 v{T+6}, 1, v{T+6}')
        a(f'v_mul_u32_u24 v{T+6}, 0x3f80, v{T+6}')
        a(f'v_bfe_i32 v{T+7}, v0, 1, 1')
        a(f'v_and_b32 v{T+7}, v{T+7}, v{T+6}')
        a(f'v_xor_b32 v{T+6}, v{T+7}, v{T+6}')
        a.wait(vm=['mo'])
        a(f'v_mov_b32 v{T+8}, v{MO}')
        a(f'v_mov_b32 v{T+9}, v{MO+1}')
        a(f'{MF} v[{MO}:{MO+3}], v[{T+8}:{T+9}], v[{T+6}:{T+7}], 0')
        a(f'v_lshrrev_b32 v{T+4}, 4, v0')
        a(f'v_and_b32 v{T+5}, 3, v0')
        a(f'v_lshl_add_u32 v{T+4}, v{T+4}, 2, v{T+5}')
        a(f'v_bfe_u32 v{T+5}, v0, 2, 2')
        a(f'v_mul_u32_u24 v{T+5}, {RC//4}, v{T+5}')
        a(f'v_add_u32 v{T+4}, v{T+4}, v{T+5}')
        a(f'v_lshlrev_b32 v{VAM}, 3, v{T+4}')
        a(f'v_add_u32 v{VAM}, {M64}, v{VAM}')
        a(f'v_and_b32 v{T+4}, -2, v{T+4}')
        a(f'v_lshlrev_b32 v{VAC}, 2, v{T+4}')
        for i in range(ng): a(f'v_add_f32 v{AA1+i}, v{AA1+i}, v{AA1+i}')
        rndl(range(GG, GG + ng))
    def RO(rd, ng, bufs, first, last):
        a('s_mov_b64 exec, -1')
        its = [(i, g) for g in range(caps[rd] // 4) for i in range(ng)]
        nb = len(bufs)
        def rdq(q):
            i, g = its[q]; b = bufs[q % nb]
            a.lds(f'ds_read_b64_tr_b16 v[{b}:{b+1}], v{VAC} offset:{C32 + 1024*i + 4*RC*g}', f'a{q}')
            a.lds(f'ds_read_b64_tr_b16 v[{b+2}:{b+3}], v{VAM} offset:{2048*i + 4*RM*g}', f'b{q}')
        D = min(nb - 1, cfg.rod, len(its))
        for q in range(D): rdq(q)
        if not last:
            a(f'v_lshrrev_b32 v{T}, 6, v0')
            a(f'v_and_b32 v{T+1}, 3, v0')
            a(f'v_lshl_add_u32 v{T}, v{T}, 2, v{T+1}')
            a(f'v_bfe_u32 v{T+1}, v0, 2, 4')
            a(f'v_mul_u32_u24 v{T+1}, {RC}, v{T+1}')
            a(f'v_min_u32 v{T+2}, {RC//16 - 1 - 128}, v{T}')
            a(f'v_lshl_add_u32 v{T}, v{T}, 4, v{T+1}')
            a(f'v_lshl_add_u32 v{T+2}, v{T+2}, 4, v{T+1}')
            for k in range(4): a(f'v_mov_b32 v{T+4+k}, 0')
        for q, (i, g) in enumerate(its):
            b = bufs[q % nb]
            if q + D < len(its): rdq(q + D)
            if q + D == len(its) - 1 or (q == 0 and D == len(its)):
                if last:
                    for k in range(ng): a.lds(f'ds_read_b64 v[{T+2*k}:{T+2*k+1}], v{VSO} offset:{8192*k}', f'f{k}')
                else:
                    for k in range(ng): a.lds(f'ds_write_b128 v{T+2 if k == 2 else T}, v[{T+4}:{T+7}] offset:{C32 + 1024*k}')
            a.wait(lg=[f'b{q}'])
            c = '0' if (first and g == 0) else f'v[{ACC+4*i}:{ACC+4*i+3}]'
            a(f'{MF} v[{ACC+4*i}:{ACC+4*i+3}], v[{b}:{b+1}], v[{b+2}:{b+3}], {c}')
    WD = WU = None
    def FINA(r0, r1):
        a('s_mov_b64 exec, -1')
        a(f'v_and_b32 v{T}, 12, v0')
        a(f'v_lshlrev_b32 v{T}, 1, v{T}')
        a.lds(f'ds_read_b64_tr_b16 v[{r0+2}:{r0+3}], v{T} offset:{WB+192}', 'wd')
        a.lds(f'ds_read_b64_tr_b16 v[{r1+2}:{r1+3}], v{T} offset:{WB+224}', 'wu')
        a(f'v_lshlrev_b32 v{VSO}, 3, v0')
        a(f'v_add_u32 v{VSO}, {FB}, v{VSO}')
        a(f'v_lshlrev_b32 v{VCN}, 1, v0')
        a('s_add_u32 s18, s2, 4096')
        a('s_mov_b32 s16, 0xf0f0f0f0')
        a('s_mov_b32 s17, 0xf0f0f0f0')
        a.wait(lg=['wu'])
        for r in (r0, r1):
            a(f'v_lshlrev_b32 v{r}, 16, v{r+2}')
            a(f'v_and_b32 v{r+1}, 0xffff0000, v{r+2}')
            a(f'v_lshlrev_b32 v{r+2}, 16, v{r+3}')
            a(f'v_and_b32 v{r+3}, 0xffff0000, v{r+3}')
    def FIN(ng, r0, r1):
        GR = range(ng)
        qp = lambda k: f'quad_perm:[{k},{k},{k},{k}] row_mask:0xf bank_mask:0xf'
        for i in GR:
            for l in range(2): a(f'v_cndmask_b32 v{ACC+4*i+l}, v{ACC+4*i+l}, v{ACC+4*i+2+l}, s[16:17]')
        a.wait(lg=[f'f{ng-1}'])
        for i in GR:
            for l in range(2): a(f'v_add_f32 v{ACC+4*i+l}, v{ACC+4*i+l}, v{T+2*i+l}')
        for k in range(4):
            for i in GR:
                for l in range(2):
                    a(f'{"v_mul_f32_dpp" if k == 0 else "v_fmac_f32_dpp"} v{ACC+4*i+2+l}, v{ACC+4*i+l}, v{r0+k} {qp(k)}')
        for i in GR: a(f'v_mul_f32 v{T+i}, v{AA0+i}, v{ACC+4*i+2}')
        for i in GR: a(f'v_fmac_f32 v{T+i}, v{AA1+i}, v{ACC+4*i+3}')
        rndl(T + i for i in GR)
        U = T + 4
        for k in range(4):
            for i in GR: a(f'{"v_mul_f32_dpp" if k == 0 else "v_fmac_f32_dpp"} v{U+i}, v{T+i}, v{r1+k} {qp(k)}')
        rndl(U + i for i in GR)
        for i in GR: a(f'v_mul_f32 v{U+i}, v{U+i}, v{GG+i}')
        rndl(U + i for i in GR)
        for i in GR: a(f'v_add_f32 v{U+i}, v{U+i}, v{MO+i}')
        a(f'v_cvt_pk_bf16_f32 v{U}, v{U}, v{U+1}')
        a.vmem(f'buffer_store_short v{U}, v{VCN}, s[12:15], s2 offen', 'st')
        a.vmem(f'buffer_store_short_d16_hi v{U}, v{VCN}, s[12:15], s2 offen offset:2048', 'st')
        if ng == 3:
            a(f'v_cvt_pk_bf16_f32 v{U+2}, v{U+2}, v{U+2}')
            a('v_cmpx_gt_u32 vcc, 452, v0')
            a.vmem(f'buffer_store_short v{U+2}, v{VCN}, s[12:15], s18 offen', 'st')
    def LD():
        a('s_mov_b64 exec, -1')
        a(f'v_and_b32 v{T}, 3, v0')
        a(f'v_lshrrev_b32 v{T+1}, 2, v0')
        a(f'v_lshl_add_u32 v{T}, v{T}, 8, v{T+1}')
        a(f'v_min_u32 v{T}, 624, v{T}')
        a('s_lshr_b32 s0, s2, 2')
        a(f'v_lshl_add_u32 v{T+1}, v{T}, 1, s0')
        a.vmem(f'global_load_ushort v{DI}, v{T+1}, s[68:69]', 'dist')
        a(f'v_lshlrev_b32 v{T}, 3, v{T}')
        a.vmem(f'buffer_load_dwordx2 v[{MO}:{MO+1}], v{T}, s[8:11], s2 offen', 'mo')
        if True:
            a('s_cmp_lg_u32 s3, 15')
            a('s_cbranch_scc1 k2_now')
            a(f'v_and_b32 v{T}, 63, v0')
            a(f'v_lshlrev_b32 v{T}, 3, v{T}')
            a('s_mov_b32 exec_hi, 0')
            for msk, p, o in ((0xff, 60, 0), (0xffff00, 62, -64), (0xf000000, 64, -192), (0xf0000000, 66, -224)):
                a(f's_mov_b32 exec_lo, {hex(msk)}')
                a(f'global_load_dwordx2 v[{WTS}:{WTS+1}], v{T}, s[{p}:{p+1}] offset:{o}')
            a('k2_now:')
    def ZM(lo, hi):
        a('s_mov_b64 exec, -1')
        a(f'v_lshlrev_b32 v{T}, 4, v0')
        a(f'v_add_u32 v{T}, {lo}, v{T}')
        for k in range(4): a(f'v_mov_b32 v{T+4+k}, 0')
        n = (hi - lo) // 16
        for k in range((n + 1023) // 1024):
            if n - 1024*k < 1024: a(f'v_cmpx_gt_u32 vcc, {n - 1024*k}, v0')
            a.lds(f'ds_write_b128 v{T}, v[{T+4}:{T+7}] offset:{16384*k}')

    OUT, IN, ANG, BIN, RK, BS, VS1, WTS, CTR = 4, 14, 24, 30, 40, 50, 122, 76, 78
    S_ = 60; FLG = R(4)
    KC, KB = BK, BK + 4 * 1028
    RB_, RD_, X_ = ZB, ZB + 10240, 16384
    assert KB % 16 == 0 and RD_ + 40000 <= FB and RB_ - X_ <= 65535 and 0 <= RD_ - 4 * X_ <= 65535
    def ex1000():
        a('s_mov_b64 exec, s[76:77]')
    def head():
        a('s_cmp_ge_u32 s2, 256')
        a('s_cbranch_scc1 k2_end')
        a('s_load_dwordx2 s[16:17], s[0:1], 16')
        a('s_load_dwordx2 s[4:5], s[0:1], 104')
        a('s_load_dwordx2 s[20:21], s[0:1], 8')
        a('s_load_dwordx2 s[24:25], s[0:1], 32')
        a('s_load_dwordx2 s[8:9], s[0:1], 0')
        a('s_load_dwordx2 s[12:13], s[0:1], 88')
        a('s_load_dwordx8 s[60:67], s[0:1], 56')
        a('s_load_dwordx2 s[68:69], s[0:1], 24')
        a('s_load_dwordx2 s[70:71], s[0:1], 96')
        if cfg.diag:
            a(f'v_mov_b32 v{VS}, 0')
            a(f'v_mov_b32 v{VS1}, 0')
        stamp(a, cfg, 0, VS1)
        srd(a, 16, 10240000); srd(a, 20, 10240000); srd(a, 24, 5120000)
        srd(a, 4, WSZ); srd(a, 8, 1280000); srd(a, 12, 1280004)
        a('v_lshrrev_b32 v3, 6, v0')
        a('v_lshlrev_b32 v1, 3, v0')
        a('v_lshlrev_b32 v2, 2, v0')
        a('v_readfirstlane_b32 s3, v3')
        a('s_mov_b32 s78, s2')
        a('s_mul_i32 s40, s2, 40000')
        for c in range(1, 5): a(f's_add_u32 s{40+c}, s40, {8000*c}')
        for c in range(5): a(f's_lshr_b32 s{45+c}, s{40+c}, 1')
        a('s_and_b32 s79, s2, 7')
        a('s_lshl_b32 s79, s79, 5')
        a('s_lshr_b32 s80, s2, 3')
        a('s_add_u32 s79, s79, s80')
        a('s_mul_i32 s2, s79, 5000')
        a('s_and_b32 s82, s79, 3')
        a('s_lshr_b32 s79, s79, 2')
        a('s_lshl_b32 s79, s79, 10')
        a('s_add_u32 s79, s79, s82')
        a('s_lshl_b32 s79, s79, 2')
        a(f's_add_u32 s79, s79, {OFFB}')
        a(f's_mul_i32 s80, s80, {cfg.rot}')
        a('v_cmp_gt_u32 s[76:77], s3, v0' if False else 'v_cmp_gt_u32 vcc, 1000, v0')
        a('s_mov_b64 s[76:77], vcc')
        a(f'v_mov_b32 v{ZR}, 0')
        a.wait_lg0()
        a(f's_mov_b32 s81, {cfg.spin}')
        a('s_cmp_ge_u32 s78, 16')
        a('s_cbranch_scc1 k1_noclr')
        a('s_lshl_b32 s0, s78, 14')
        a(f's_add_u32 s0, s0, {OFFB}')
        for k in range(4): a(f'v_mov_b32 v{T+4+k}, 0')
        a(f'v_lshlrev_b32 v{T}, 4, v0')
        a(f'buffer_store_dwordx4 v[{T+4}:{T+7}], v{T}, s[4:7], s0 offen sc1')
        a('k1_noclr:')
        ex1000()
    def INJ():
        a('s_mov_b64 exec, -1')
        a(f'v_and_b32 v{T+2}, 63, v0')
        a(f'v_mul_u32_u24 v{T+2}, 1028, v{T+2}')
        a(f'v_subrev_u32 v{T}, s80, v0')
        a(f'v_and_b32 v{T}, 255, v{T}')
        a(f'v_lshlrev_b32 v{T}, 2, v{T}')
        a('v_cmpx_gt_u32 vcc, 640, v0')
        for r in range(NR): a.lds(f'ds_write_b32 v2, v2 offset:{CNT[r]}')
        a('v_cmpx_gt_u32 vcc, 256, v0')
        a.lds(f'ds_write_b32 v2, v{T} offset:{BC}')
        a('v_cmpx_gt_u32 vcc, 64, v0')
        a.lds(f'ds_write_b32 v{T+2}, v{ZR} offset:{BK+1024}')
        ZM(FB, LDS)
        ex1000()
    def INI():
        a('v_cmpx_gt_u32 vcc, 256, v0')
        a.lds(f'ds_write_b32 v2, v{ZR} offset:{KC}')
        ex1000()
        a('v_mov_b32 v3, 1')
        a(f'v_mov_b32 v73, {f2h(SCALE)}')
        a('s_mov_b32 s72, 6871948')
        a('s_mov_b32 s73, -625')
        a('s_mov_b32 s74, 0xfffff')
        a(f's_mul_i32 s50, s78, {STRIDE}')
        a('s_lshr_b32 s51, s50, 2')
        a(f's_add_u32 s51, s51, {DOFF + BBASE}')
        a(f's_add_u32 s50, s50, {DOFF - 10240}')
        a('s_cmp_lt_u32 s3, 10')
        a('s_cselect_b32 s54, s51, s50')
        for i in range(1, 4): a(f's_add_u32 s{50+i}, s50, {16384*i}')
    def FA():
        a('s_cmp_lg_u32 s3, 0')
        a('s_cbranch_scc1 k1_nofa')
        a('s_mov_b64 exec, 0xffff')
        a(f'global_load_dword v{CTR}, v2, s[70:71] sc1')
        ex1000()
        a('k1_nofa:')
    def ld_out(c): a.vmem(f'buffer_load_dwordx2 v[{OUT+2*c}:{OUT+2*c+1}], v1, s[16:19], s{40+c} offen{cfg.ldnt}', f'o{c}')
    def ld_in(c): a.vmem(f'buffer_load_dwordx2 v[{IN+2*c}:{IN+2*c+1}], v1, s[20:23], s{40+c} offen{cfg.ldnt}', f'i{c}')
    def ld_ang(c): a.vmem(f'buffer_load_dword v{ANG+c}, v2, s[24:27], s{45+c} offen{cfg.ldnt}', f'a{c}')
    def rank(c):
        a.wait(vm=[f'o{c}'])
        for i in (2*c, 2*c+1):
            a(f'v_mul_hi_u32_u24 v{BIN+i}, s72, v{OUT+i}')
            a(f'v_mad_i32_i24 v{OUT+i}, v{BIN+i}, s73, v{OUT+i}')
            a(f'v_lshlrev_b32 v{BIN+i}, 2, v{BIN+i}')
            a.lds(f'ds_add_rtn_u32 v{RK+i}, v{BIN+i}, v3 offset:{KC}', f'r{i}')
    def scan():
        a.wait_lg0()
        stamp(a, cfg, 1, VS1)
        a('s_barrier')
        a('s_cmp_lg_u32 s3, 0')
        a(f's_cbranch_scc1 k1_noscan')
        T = S_
        a(f'v_lshlrev_b32 v{T+12}, 4, v0')
        a(f'ds_read_b128 v[{T}:{T+3}], v{T+12} offset:{KC}')
        a('s_waitcnt lgkmcnt(0)')
        a(f'v_add_u32 v{T+5}, v{T}, v{T+1}')
        a(f'v_add_u32 v{T+6}, v{T+5}, v{T+2}')
        a(f'v_add_u32 v{T+7}, v{T+6}, v{T+3}')
        a(f'v_mov_b32 v{T+4}, v{T+7}')
        a(f'v_subrev_u32 v{T+7}, {X_}, v{T+7}')
        for d in ('row_shr:1 row_mask:0xf', 'row_shr:2 row_mask:0xf', 'row_shr:4 row_mask:0xf', 'row_shr:8 row_mask:0xf',
                  'row_bcast:15 row_mask:0xa', 'row_bcast:31 row_mask:0xc'):
            a(f'v_add_u32_dpp v{T+4}, v{T+4}, v{T+4} {d} bank_mask:0xf')
        a(f'v_sub_u32 v{T+4}, v{T+4}, v{T+7}')
        a(f'v_add_u32 v{T+7}, v{T+4}, v{T+6}')
        a(f'v_add_u32 v{T+6}, v{T+4}, v{T+5}')
        a(f'v_add_u32 v{T+5}, v{T+4}, v{T}')
        a(f'ds_write_b128 v{T+12}, v[{T+4}:{T+7}] offset:{KB}')
        for i in range(4): a(f'v_lshl_or_b32 v{T+i}, v{T+i}, 16, v{T+4+i}')
        a('s_waitcnt lgkmcnt(0)')
        a('s_barrier')
        a('s_cmp_ge_u32 s78, 16')
        a('s_cbranch_scc1 k1_scanned')
        a('s_lshl_b32 s0, s78, 2')
        a(f'v_mov_b32 v{T+4}, s0')
        a('s_mov_b64 exec, 1')
        a(f'global_store_dword v{T+4}, v3, s[70:71] sc1')
        a('s_mov_b64 exec, -1')
        a('s_branch k1_scanned')
        a(f'k1_noscan:')
        a('s_barrier')
        a('k1_scanned:')
        for i in range(10): a.lds(f'ds_read_b32 v{BS+i}, v{BIN+i} offset:{KB}', f'b{i}')
        stamp(a, cfg, 2, VS1)
    def enc(c):
        T = 74
        a.wait(vm=[f'i{c}'])
        for h in range(2):
            i = 2*c + h
            a(f'v_mul_hi_u32_u24 v{T+h}, s72, v{IN+i}')
            a(f'v_mad_i32_i24 v{IN+i}, v{T+h}, s73, v{IN+i}')
            a(f'v_lshl_or_b32 v{OUT+i}, v{IN+i}, 10, v{OUT+i}')
            a(f'v_mov_b32 v{IN+i}, v{T+h}')
        a.wait(vm=[f'a{c}'])
        a(f'v_lshlrev_b32 v{T}, 16, v{ANG+c}')
        a(f'v_and_b32 v{T+1}, 0xffff0000, v{ANG+c}')
        for h in range(2): a(f'v_mul_f32 v{T+h}, 0.15915494, v{T+h}')
        for h in range(2): a(f'v_fract_f32 v{T+h}, v{T+h}')
        for h in range(2): a(f'v_cos_f32 v{T+h}, v{T+h}')
        for h in range(2): a(f'v_fmaak_f32 v{T+h}, v73, v{T+h}, 0x49000000')
        for h in range(2): a(f'v_cvt_i32_f32 v{T+h}, v{T+h}')
        for h in range(2): a(f'v_sub_u32 v{T+h}, v{T+h}, v{OUT+2*c+h}')
        for h in range(2): a(f'v_bfi_b32 v{OUT+2*c+h}, s74, v{OUT+2*c+h}, v{T+h}')
    def wr(c):
        for i in (2*c, 2*c+1):
            a.wait(lg=[f'b{i}'])
            a(f'v_add_u32 v{RK+i}, v{RK+i}, v{BS+i}')
            a(f'v_lshlrev_b32 v{BS+i}, 2, v{RK+i}')
            a.lds(f'ds_write_b8 v{RK+i}, v{IN+i} offset:{RB_ - X_}')
            a.lds(f'ds_write_b32 v{BS+i}, v{OUT+i} offset:{RD_ - 4*X_}')
    def copyout():
        a.wait_lg0()
        stamp(a, cfg, 3, VS1)
        a('s_mov_b64 exec, -1')
        a('v_lshlrev_b32 v1, 4, v0')
        a(f'v_add_u32 v2, {RB_}, v1')
        a('v_subrev_u32 v3, 632, v0')
        a('s_barrier')
        for i in range(4): a.lds(f'ds_read_b128 v[{4+4*i}:{7+4*i}], v2 offset:{16384*i}', f'c{i}')
        for i in range(4):
            if i == 0: a('v_cmpx_le_u32 vcc, 8, v3')
            if i == 1: a('s_mov_b64 exec, -1')
            if i == 3:
                a(f'v_cmpx_gt_u32 vcc, {3140-3072}, v0')
                a(f's_cbranch_execz k1_skip')
            a.wait(lg=[f'c{i}'])
            a.vmem(f'buffer_store_dwordx4 v[{4+4*i}:{7+4*i}], v1, s[4:7], s{50+i if i else 54} offen{cfg.stf}', f's{i}')
        a(f'k1_skip:')
        a('s_mov_b64 exec, -1')
        a.wait_lg0()
    def seam():
        stamp(a, cfg, 4, VS1)
        a('v_lshrrev_b32 v4, 6, v0')
        a('v_and_b32 v5, 63, v0')
        a('v_lshlrev_b32 v1, 2, v5')
        a(f'v_add_u32 v2, {BBASE + DOFF*3//4}, v5')
        a('v_mov_b32 v3, 1028')
        a('v_lshl_add_u32 v6, v4, 4, v5')
        a(f'v_mul_u32_u24 v6, {STRIDE}, v6')
        a(f'v_add_u32 v6, {DOFF - 4*X_}, v6')
        a('v_lshl_add_u32 v7, v5, 4, v4')
        a('v_add_u32 v7, s80, v7')
        a('v_and_b32 v7, 255, v7')
        a('v_mul_u32_u24 v5, 1028, v5')
        a('v_lshl_add_u32 v4, v4, 2, v5')
        a('s_lshl_b32 s0, s3, 8')
        a('s_add_u32 s79, s79, s0')
        a(f'v_lshlrev_b32 v{FLG}, 2, v1')
        a(f'v_lshlrev_b32 v{S_+4}, 10, v1')
        a('s_lshl_b32 s0, s78, 4')
        a(f's_add_u32 s0, s0, {OFFB}')
        a.wait_vm0()
        stamp(a, cfg, 5, VS1, True)
        a('s_cmp_lg_u32 s3, 0')
        a('s_cbranch_scc1 k1_nofl')
        a('s_mov_b64 exec, 0xffff')
        a('k1_cchk:')
        a(f'v_cmp_ne_u32 vcc, 1, v{CTR}')
        a('s_cbranch_vccnz k1_cwait')
        a('s_mov_b64 exec, -1')
        a('s_barrier')
        a(f'buffer_store_dwordx4 v[{S_}:{S_+3}], v{S_+4}, s[4:7], s0 offen sc1')
        a('s_branch k1_fl')
        a('k1_nofl:')
        a('s_barrier')
        a('k1_fl:')
        stamp(a, cfg, 0, VS)
        with a.ool():
            a('k1_cwait:')
            a('s_sub_u32 s81, s81, 1')
            a('s_cbranch_scc1 k2_end')
            a('s_sleep 4')
            a(f'global_load_dword v{CTR}, v1, s[70:71] sc1')
            a('s_waitcnt vmcnt(0)')
            a('s_branch k1_cchk')
    def POLL():
        a('s_mov_b64 exec, 0xffff')
        a.vmem(f'buffer_load_dword v{VCN}, v{FLG}, s[4:7], s79 offen sc1', 'off')
    head()
    pre_seen = set()
    for k, c in expand(cfg.sa):
        if k == 'O': ld_out(c)
        elif k == 'I': ld_in(c)
        elif k == 'A': ld_ang(c)
        elif k == 'INI': INI()
        elif k == 'BAR': bar()
        elif k == 'FA': FA()
        elif k == 'INJ': INJ()
        elif k == 'SB': a('s_barrier')
        elif k == 'LD': LD(); ex1000()
        elif k == 'WST': WST(); ex1000()
        elif k == 'R': rank(c)
        elif k == 'SCAN': scan()
        elif k == 'E': enc(c)
        elif k == 'W': wr(c)
        elif k == 'CO': assert 'FA' in pre_seen; copyout()
        else: raise Exception(k)
        pre_seen.add(k)
    assert {'INI', 'INJ', 'LD', 'WST'} <= pre_seen
    seam()
    if cfg.poll0: POLL()
    a('s_cmp_ge_u32 s3, 8')
    a('s_cbranch_scc1 k2_N')
    save = (list(a.vm), list(a.lg))

    def body(cls):
        isR = cls == 'R'; NG = 3 if isR else 2
        cur[0] = rmap if isR else rmapn
        ops = expand((cfg.srt if isR else cfg.snt or cfg.srt) + ' ' + (cfg.sr if isR else cfg.sn or cfg.sr))
        order = [j for k, j in ops if k == 'L']
        assert sorted(order) == list(range(16))
        gorder = [j for k, j in ops if k == 'G']
        for kk in ('G', 'W', 'SA', 'SW'): assert sorted(j for k, j in ops if k == kk) == list(range(16)), kk
        done = set(); nl = 0; ng = 0; seen = set(); fr = None; left = False
        nro = [j for k, j in ops if k == 'RO']
        assert nro == list(range(NR))
        for k, j in ops:
            if k == 'L':
                if nl == 0: decode(cls, order)
                L(j); nl += 1
            elif k == 'LEFT': assert nl == 16; LEFT(cls)
            elif k == 'G': G(j); ng += 1
            elif k == 'SA': SA(j)
            elif k == 'SW': SW(j, cls)
            elif k == 'DEC': assert 'LEFT' in seen; DEC(gorder)
            elif k == 'W': assert 'ZM' in seen or cfg.zm0; W(j, cls); done.add(j)
            elif k == 'ZM': ZM(ZB, FB)
            elif k == 'PRE': PRE(NG)
            elif k == 'BAR': bar()
            elif k == 'SB': a('s_barrier')
            elif k == 'ST': stamp(a, cfg, j, VS)
            elif k == 'PRIO': a(f's_setprio {j}')
            elif k == 'RO':
                assert 'PRE' in seen and (j < NR - 1 or fr)
                assert all(x in done for x in range(16) if rnd(x) <= j)
                RO(j, NG, [R(x) for x in sorted(done) if R(x) not in (fr or ())] + [T + 8, T + 12], j == 0, j == NR - 1)
            elif k == 'FINA':
                assert 'LEFT' in seen
                fr = [R(x) for x in sorted(done)][:2]; FINA(*fr)
            elif k == 'FIN': FIN(NG, *fr)
            else: raise Exception(k)
            seen.add(k)
        if cfg.diag:
            a.wait_vm0()
            stamp(a, cfg, 9, VS, True)
            stamp_out(a, cfg, 0, VS1, 1, 4, 78)
            stamp_out(a, cfg, 1, VS, 1, 4, 78)
        a('s_endpgm')
    body('R')
    a('k2_N:')
    a.vm, a.lg = save
    body('N')
    a('k2_end:')
    a('s_endpgm')
    return a.text(), 124 if cfg.diag else 120, LDS

def desc(name, vg):
    return f'''.amdhsa_kernel {name}
  .amdhsa_next_free_vgpr {vg}
  .amdhsa_next_free_sgpr 102
  .amdhsa_accum_offset {(vg+3)//4*4}
  .amdhsa_group_segment_fixed_size 0
  .amdhsa_kernarg_size 112
  .amdhsa_user_sgpr_count 2
  .amdhsa_user_sgpr_kernarg_segment_ptr 1
  .amdhsa_system_sgpr_workgroup_id_x 1
.end_amdhsa_kernel
'''

def build(cfg):
    t2, v2, l2 = k2(cfg)
    n = NAME + '_kernel'
    s = HDR + f'; @launch grid=(256,1,1) block=(1024,1,1) lds={l2}\n'
    s += '.amdgcn_target "amdgcn-amd-amdhsa--gfx950"\n.text\n'
    s += f'.globl {n}\n.p2align 8\n.type {n},@function\n{n}:\n{t2}'
    s += '.section .rodata,"a"\n.p2align 6\n' + desc(n, v2)
    return s

if __name__ == '__main__':
    ap = argparse.ArgumentParser()
    ap.add_argument('-o', default='cdna_kernels/' + NAME + '.s')
    ap.add_argument('kv', nargs='*')
    x = ap.parse_args()
    cfg = Cfg(); cfg.probe = 0; cfg.probek = 0; cfg.probes = 0; cfg.epre = 0; cfg.epost = 0; cfg.rep = 1; cfg.rep2 = 1
    cfg.caps = '16/16'; cfg.rmap = 'r0000000011111111'; cfg.rod = 5; cfg.lf = ''; cfg.gl = 0
    cfg.exp = 0; cfg.k1pad = 0; cfg.rot = 0; cfg.rbn = 8
    cfg.sa = 'O0-4 INI BAR I,A0-4 INJ R0-4 SCAN LD E,W0-4 WST FA CO'; cfg.poll0 = 1; cfg.pbar = 0; cfg.nrep = 8; cfg.frs = 1024; cfg.slp0 = 4; cfg.spin = 400000; cfg.slp = 0; cfg.lf = ' sc1'
    cfg.zm0 = 0; cfg.rmapn = 0; cfg.snt = ''; cfg.sn = ''; cfg.rod = 7
    cfg.gf = ''; cfg.ld0 = 0
    cfg.ld0 = 1; cfg.rot = 1
    cfg.srt = 'PRE L0-15 LEFT ST2 SA0-1 SA2-15,SW0-13 SW14-15 BAR ST3 DEC'
    cfg.sr = 'G0-2 ZM BAR G3 W0-3,G4-7 SB G8 W4-7 BAR ST5 RO0 G9-10 BAR ST6 G11-12 W8-10,G13-15 FINA W11-15 BAR ST7 RO1 ST8 FIN'
    cfg.sn = 'G0-2 ZM BAR G3 W0-3,G4-7 SB G8 W4-7 BAR ST5 G9-10 RO0 BAR ST6 G11-12 W8-10,G13-15 FINA W11-15 BAR ST7 RO1 ST8 FIN'
    for kv in x.kv:
        k, v = kv.split('=', 1)
        try: v = int(v, 0)
        except ValueError: v = v.replace('_', ' ')
        setattr(cfg, k, v)
    open(x.o, 'w').write(build(cfg))
```

```python
import sys, re
NAME = 'standalone__molecular_angular_gemnet__graph'
DIAGB = 64 << 20
src, dst, kern, slot, mode, amp = sys.argv[1], sys.argv[2], int(sys.argv[3]), int(sys.argv[4]), sys.argv[5], int(sys.argv[6])
s = open(src).read()
s = re.sub(r'; @launch grid=', f'; @launch kernel={NAME}_kernel grid=', s)
i = s.index('.amdgcn_target')
s = s[:i] + '; @launch kernel=probe_kernel grid=(1,1,1) block=(1024,1,1) lds=64\n' + s[i:]
op = {'max': 'max_u32', 'min': 'min_u32', 'avg': 'add_u32'}[mode]
init = {'max': 0, 'min': -1, 'avg': 0}[mode]
k = f'''.globl probe_kernel
.p2align 8
.type probe_kernel,@function
probe_kernel:
    s_cmp_ge_u32 s2, 1
    s_cbranch_scc1 pr_end
    s_load_dwordx2 s[4:5], s[0:1], 104
    s_memrealtime s[10:11]
    s_waitcnt lgkmcnt(0)
    s_add_u32 s4, s4, {DIAGB}
    s_addc_u32 s5, s5, 0
    s_load_dword s6, s[4:5], 0
    v_mov_b32 v1, 0
    v_mov_b32 v2, -1
    v_mov_b32 v3, {init}
    ds_write_b64 v1, v[2:3]
    v_lshlrev_b32 v4, 8, v0
    v_add_u32 v5, {kern * 262144 + slot * 4}, v4
'''
for j in range(4):
    k += f'    global_load_dword v{8+j}, v4, s[4:5] offset:{64*j}\n    global_load_dword v{12+j}, v5, s[4:5] offset:{64*j}\n'
k += '    s_waitcnt vmcnt(0) lgkmcnt(0)\n    s_barrier\n    s_sub_u32 s6, s6, 0x4000\n'
for j in range(4):
    k += f'    v_subrev_u32 v{8+j}, s6, v{8+j}\n    v_subrev_u32 v{12+j}, s6, v{12+j}\n    ds_min_u32 v1, v{8+j}\n    ds_{op} v1, v{12+j} offset:4\n'
k += f'''    s_waitcnt lgkmcnt(0)
    s_barrier
    ds_read_b64 v[2:3], v1
    s_waitcnt lgkmcnt(0)
    v_readfirstlane_b32 s12, v2
    v_readfirstlane_b32 s13, v3
    s_nop 4
    {'s_lshr_b32 s13, s13, 12' if mode == 'avg' else 's_nop 0'}
    s_sub_u32 s13, s13, s12
    s_min_u32 s13, s13, 5000
    s_mul_i32 s13, s13, {amp}
    s_add_u32 s13, s13, 2000
    s_mov_b32 s7, 200000
pr_l:
    s_memrealtime s[8:9]
    s_waitcnt lgkmcnt(0)
    s_sub_u32 s8, s8, s10
    s_sub_u32 s7, s7, 1
    s_cmp_eq_u32 s7, 0
    s_cbranch_scc1 pr_end
    s_cmp_lt_u32 s8, s13
    s_cbranch_scc1 pr_l
pr_end:
    s_endpgm
'''
i = s.index('.section .rodata')
s = s[:i] + k + s[i:]
s += '''.p2align 6
.amdhsa_kernel probe_kernel
  .amdhsa_next_free_vgpr 16
  .amdhsa_next_free_sgpr 102
  .amdhsa_accum_offset 16
  .amdhsa_group_segment_fixed_size 0
  .amdhsa_kernarg_size 112
  .amdhsa_user_sgpr_count 2
  .amdhsa_user_sgpr_kernarg_segment_ptr 1
  .amdhsa_system_sgpr_workgroup_id_x 1
.end_amdhsa_kernel
'''
open(dst, 'w').write(s)
```

```python
import sys, re
NAME = 'standalone__molecular_angular_gemnet__graph'
DIAGB = 64 << 20
src, dst, kern, slot, mode, amp = sys.argv[1], sys.argv[2], int(sys.argv[3]), int(sys.argv[4]), sys.argv[5], int(sys.argv[6])
s = open(src).read()
s = re.sub(r'; @launch grid=', f'; @launch kernel={NAME}_kernel grid=', s)
i = s.index('.amdgcn_target')
s = s[:i] + '; @launch kernel=probe_kernel grid=(1,1,1) block=(1024,1,1) lds=64\n' + s[i:]
op = {'gap': 'max_u32', 'max': 'max_u32', 'min': 'min_u32', 'avg': 'add_u32'}[mode]
init = {'gap': 0, 'max': 0, 'min': -1, 'avg': 0}[mode]
k = f'''.globl probe_kernel
.p2align 8
.type probe_kernel,@function
probe_kernel:
    s_cmp_ge_u32 s2, 1
    s_cbranch_scc1 pr_end
    s_load_dwordx2 s[4:5], s[0:1], 104
    s_memrealtime s[10:11]
    s_waitcnt lgkmcnt(0)
    s_add_u32 s4, s4, {DIAGB}
    s_addc_u32 s5, s5, 0
    s_load_dword s6, s[4:5], 0
    v_mov_b32 v1, 0
    v_mov_b32 v2, -1
    v_mov_b32 v3, {init}
    ds_write_b64 v1, v[2:3]
    v_lshlrev_b32 v4, 8, v0
    v_add_u32 v5, {kern * 262144 + slot * 4}, v4
'''
for j in range(4):
    k += f'    global_load_dword v{8+j}, v4, s[4:5] offset:{64*j}\n    global_load_dword v{12+j}, v5, s[4:5] offset:{64*j}\n'
k += '    s_waitcnt vmcnt(0) lgkmcnt(0)\n    s_barrier\n    s_sub_u32 s6, s6, 0x4000\n'
for j in range(4):
    k += f'    v_subrev_u32 v{8+j}, s6, v{8+j}\n    v_subrev_u32 v{12+j}, s6, v{12+j}\n    ds_min_u32 v1, v{8+j}\n    ds_{op} v1, v{12+j} offset:4\n'
k += f'''    s_waitcnt lgkmcnt(0)
    s_barrier
    ds_read_b64 v[2:3], v1
    s_waitcnt lgkmcnt(0)
    v_readfirstlane_b32 s12, v2
    v_readfirstlane_b32 s13, v3
    s_nop 4
    {'s_lshr_b32 s13, s13, 12' if mode == 'avg' else 's_nop 0'}
    {'s_sub_u32 s12, s10, s6' if mode == 'gap' else 's_nop 0'}
    {'s_sub_u32 s13, s12, s13' if mode == 'gap' else 's_sub_u32 s13, s13, s12'}
    s_min_u32 s13, s13, 5000
    s_mul_i32 s13, s13, {amp}
    s_add_u32 s13, s13, 2000
    s_mov_b32 s7, 200000
pr_l:
    s_memrealtime s[8:9]
    s_waitcnt lgkmcnt(0)
    s_sub_u32 s8, s8, s10
    s_sub_u32 s7, s7, 1
    s_cmp_eq_u32 s7, 0
    s_cbranch_scc1 pr_end
    s_cmp_lt_u32 s8, s13
    s_cbranch_scc1 pr_l
pr_end:
    s_endpgm
'''
i = s.index('.section .rodata')
s = s[:i] + k + s[i:]
s += '''.p2align 6
.amdhsa_kernel probe_kernel
  .amdhsa_next_free_vgpr 16
  .amdhsa_next_free_sgpr 102
  .amdhsa_accum_offset 16
  .amdhsa_group_segment_fixed_size 0
  .amdhsa_kernarg_size 112
  .amdhsa_user_sgpr_count 2
  .amdhsa_user_sgpr_kernarg_segment_ptr 1
  .amdhsa_system_sgpr_workgroup_id_x 1
.end_amdhsa_kernel
'''
open(dst, 'w').write(s)
```

```python
import sys, argparse
from asmlib import Asm

NAME = 'standalone__molecular_angular_gemnet__graph'
HDR = open('cdna_kernels/' + NAME + '.s.ref').read().split('; Override launch')[0]

STRIDE = 40448
DOFF = 65536
BBASE = 256 * STRIDE
OFFB = DOFF + BBASE + 64 * STRIDE
FLB = OFFB + 262144
SCALE = 2145386496.0
import struct
def f2h(x): return hex(struct.unpack('<I', struct.pack('<f', x))[0])
DIAGB = 64 << 20
WSZ = 0x10000000
CENTERS = [0x00000000, 0x3e120000, 0x3e920000, 0x3edb0000, 0x3f120000, 0x3f370000, 0x3f5b0000, 0x3f800000]

class Cfg:
    nB = 8; n1 = 8; cap = 16; diag = False; sched = 'a'; ldnt = ' nt'; stf = ' sc1'; wsoff = 0

def expand(sched):
    import re
    out = []
    for t in sched.split():
        parts = t.split(',')
        seqs = []
        for p in parts:
            m = re.fullmatch(r'([A-Z]+)(?:(\d+)(?:-(\d+))?)?', p)
            k, lo, hi = m.groups()
            seqs.append((k, None if lo is None else list(range(int(lo), int(hi or lo) + 1))))
        last = seqs[-1][1]
        if last is None: out.append((seqs[0][0], None)); continue
        n = max(len(q or last) for _, q in seqs)
        for i in range(n):
            for k, q in seqs:
                q = q or last
                if i < len(q): out.append((k, q[i]))
    return out

def srd(a, r, size):
    a(f's_mov_b32 s{r+2}, {size}')
    a(f's_mov_b32 s{r+3}, 0x20000')

def stamp(a, cfg, k, vs, clk=False):
    if not cfg.diag: return
    a('s_memrealtime s[100:101]')
    a.wait_lg0()
    a(f'v_writelane_b32 v{vs}, s100, {k}')
    if k == 0 or clk:
        a('s_memtime s[100:101]')
        a.wait_lg0()
        a(f'v_writelane_b32 v{vs}, s100, {14 if k == 0 else 15}')

def stamp_out(a, cfg, kern, vs, vt, wsrd, swg):
    if not cfg.diag: return
    a('s_mov_b64 exec, 0xffff')
    a(f'v_lshrrev_b32 v{vt}, 6, v0')
    a(f'v_lshlrev_b32 v{vt}, 6, v{vt}')
    a(f'v_and_b32 v{vt+1}, 63, v0')
    a(f'v_lshl_add_u32 v{vt}, v{vt+1}, 2, v{vt}')
    a(f's_lshl_b32 s100, s{swg}, 10')
    a(f's_add_u32 s100, s100, {DIAGB + kern * 262144}')
    a(f'buffer_store_dword v{vs}, v{vt}, s[{wsrd}:{wsrd+3}], s100 offen')

def k2(cfg):
    a = Asm()
    caps = [int(x) for x in str(cfg.caps).split('/')]
    rmap = [int(x) for x in str(cfg.rmap)[1:]]
    NR = len(caps); CAP = max(caps)
    RC = 2528; RM = 2 * RC
    BC = 0; WB = 1024
    CNT = [1280 + 2560*r for r in range(NR)]; C32 = 1280 + 2560*NR; M64 = C32 + 16*RC
    FB = M64 + 16*RM
    LDS = FB + 20480
    BK = C32; BKN = 63 * 1028; ZB = BK + 64 * 1028
    assert M64 <= 65535 and LDS <= 163840 and ZB % 16 == 0 and all(c % 4 == 0 and c <= 16 for c in caps)
    R = lambda j: 8 + 4*j
    ACC, AA0, AA1, GG, MO, DI = 72, 84, 88, 92, 96, 119
    VSO, VCN, VAM, VAC, ZR = 100, 101, 5, 119, 118
    T = 102
    VS = 120
    rmapn = [int(x) for x in str(cfg.rmapn or cfg.rmap)[1:]]
    cur = [rmap]
    rnd = lambda j: cur[0][j]
    INVS = f2h(1.0 / SCALE)
    def fbadd(r, e4):
        a(f'v_lshlrev_b32 v{T}, 3, v{e4}')
        a(f'v_add_u32 v{T}, {FB}, v{T}')
        a(f'v_lshlrev_b32 v{T+5}, 16, v{r+2}')
        a(f'v_and_b32 v{T+1}, 0xffff0000, v{r+2}')
        for k in range(4):
            if k & 1: a(f'v_and_b32 v{T+2}, 0xffff0000, v{r+k//2}')
            else: a(f'v_lshlrev_b32 v{T+2}, 16, v{r+k//2}')
            a(f'v_mul_f32 v{T+3}, v{T+5}, v{T+2}')
            a(f'ds_add_f32 v{T}, v{T+3} offset:{8*k}')
            a(f'v_mul_f32 v{T+4}, v{T+1}, v{T+2}')
            a(f'ds_add_f32 v{T}, v{T+4} offset:{8*k+4}')
    def cpair(dst, d, t):
        a(f'v_cvt_f32_i32 v{dst}, v{d}')
        a(f'v_mul_f32 v{dst}, {INVS}, v{dst}')
        a(f'v_fma_f32 v{t}, v{dst}, v{dst}, -0.5')
        a(f'v_cvt_pk_bf16_f32 v{dst}, v{dst}, v{t}')
    def direct(d, b4):
        U = T + 8
        a(f'v_lshrrev_b32 v{T+5}, 7, v{d}')
        a(f'v_and_b32 v{T+5}, 0x1ff8, v{T+5}')
        a(f'v_mul_u32_u24 v{T+6}, 1250, v{b4}')
        a(f'v_add_u32 v{T+5}, v{T+5}, v{T+6}')
        a(f'buffer_load_dwordx2 v[{U}:{U+1}], v{T+5}, s[8:11], 0 offen')
        cpair(U + 2, d, T + 6)
        a(f'v_and_b32 v{T+5}, 0x3ff, v{d}')
        a(f'v_lshlrev_b32 v{T+5}, 2, v{T+5}')
        a('s_waitcnt vmcnt(0)')
        fbadd(U, T + 5)
    def ex(j): a(f's_bfm_b64 exec, s{20+j}, 0')
    def L(j):
        ex(j)
        t = ['vcc_lo', 'vcc_hi'][j & 1]
        a(f's_lshr_b32 {t}, s{36+j}, 2')
        if cfg.exp == 2: a.vmem(f'buffer_load_ubyte v{R(j)+3}, v1, s[4:7], s{36+j} offen{cfg.lf}', f'B{j}')
        elif cfg.exp == 0: a.vmem(f'buffer_load_ubyte v{R(j)+3}, v2, s[4:7], {t} offen{cfg.lf}', f'B{j}')
        a.vmem(f'buffer_load_dword v{R(j)+2}, v1, s[4:7], s{36+j} offen{cfg.lf}', f'L{j}')
    def SA(j):
        ex(j)
        a.wait(vm=[f'B{j}'])
        if cfg.exp:
            a.wait(vm=[f'L{j}'])
            a(f'v_lshrrev_b32 v{R(j)+3}, 10, v{R(j)+2}')
            a(f'v_xor_b32 v{R(j)+3}, v{R(j)+3}, v{R(j)+2}')
            a(f'v_and_b32 v{R(j)+3}, 255, v{R(j)+3}')
        a(f'v_lshlrev_b32 v{R(j)+3}, 2, v{R(j)+3}')
        a.lds(f'ds_add_rtn_u32 v{R(j)}, v{R(j)+3}, v3 offset:{BC}', f's{j}')
    def SW(j, cls):
        ex(j)
        a.wait(vm=[f'L{j}'], lg=[f's{j}'])
        a(f'v_cmp_le_u32 vcc, {BKN}, v{R(j)}')
        a(f's_cbranch_vccnz k2_so{cls}{j}')
        a(f'k2_sor{cls}{j}:')
        a.lds(f'ds_write_b32 v{R(j)}, v{R(j)+2} offset:{BK}')
        with a.ool():
            a(f'k2_so{cls}{j}:')
            a('s_and_saveexec_b64 s[0:1], vcc')
            direct(R(j) + 2, R(j) + 3)
            a('s_andn2_b64 exec, s[0:1], vcc')
            a(f's_branch k2_sor{cls}{j}')
    def DEC(order):
        a('s_mov_b64 exec, 0xffff')
        a(f'v_lshlrev_b32 v{T+1}, 2, v7')
        a.lds(f'ds_read_b32 v{T}, v{T+1} offset:{BC}', 'bc')
        a('s_mov_b64 exec, -1')
        n0 = cfg.rbn
        for j in order[:n0]: a.lds(f'ds_wrxchg_rtn_b32 v{R(j)+2}, v4, v{ZR} offset:{BK+64*j}', f'rb{j}')
        a('v_mul_u32_u24 v7, 5000, v7')
        a(f'v_mov_b32 v3, {RC}')
        a('v_mov_b32 v1, 0x1ff8')
        a('v_mov_b32 v2, 0xffc')
        for j in order: a(f'v_readlane_b32 s{36+j}, v7, {j}')
        a.wait(lg=['bc'])
        a(f'v_min_u32 v{T}, {BKN}, v{T}')
        a(f'v_mul_hi_u32_u24 v{T}, 4177985, v{T}')
        for j in order[n0:]: a.lds(f'ds_wrxchg_rtn_b32 v{R(j)+2}, v4, v{ZR} offset:{BK+64*j}', f'rb{j}')
        for j in order: a(f'v_readlane_b32 s{20+j}, v{T}, {j}')
    def G(j):
        ex(j)
        a.wait(lg=[f'rb{j}'])
        a(f'v_lshrrev_b32 v{T}, 7, v{R(j)+2}')
        a(f'v_and_b32 v{T}, v1, v{T}')
        a.vmem(f'buffer_load_dwordx2 v[{R(j)}:{R(j)+1}], v{T}, s[8:11], s{36+j} offen{cfg.gf}', f'G{j}')
        a(f'v_lshlrev_b32 v{T+1}, 2, v{R(j)+2}')
        a(f'v_and_b32 v{T+1}, v2, v{T+1}')
        a.lds(f'ds_add_rtn_u32 v{R(j)+3}, v{T+1}, v3 offset:{CNT[rnd(j)]}', f'r{j}')
        cpair(R(j) + 2, R(j) + 2, T + 2)
    def W(j, cls):
        ex(j)
        a.wait(vm=[f'G{j}'], lg=[f'r{j}'])
        a(f'v_cmp_le_u32 vcc, {caps[rnd(j)]*RC}, v{R(j)+3}')
        a(f'v_lshlrev_b32 v{T+6}, 1, v{R(j)+3}')
        a(f's_cbranch_vccnz k2_ov{cls}{j}')
        a(f'k2_ovr{cls}{j}:')
        a.lds(f'ds_write_b32 v{R(j)+3}, v{R(j)+2} offset:{C32}')
        a.lds(f'ds_write_b64 v{T+6}, v[{R(j)}:{R(j)+1}] offset:{M64}')
        with a.ool():
            a(f'k2_ov{cls}{j}:')
            a('s_and_saveexec_b64 s[0:1], vcc')
            a(f'v_mov_b32 v{T+5}, {2**32 // RC + 1}')
            a(f'v_mul_hi_u32 v{T+5}, v{T+5}, v{R(j)+3}')
            a(f'v_mul_u32_u24 v{T+5}, {RC}, v{T+5}')
            a(f'v_sub_u32 v{T+5}, v{R(j)+3}, v{T+5}')
            fbadd(R(j), T + 5)
            a('s_andn2_b64 exec, s[0:1], vcc')
            a(f's_branch k2_ovr{cls}{j}')
    def decode(cls, order):
        if not cfg.poll0: POLL()
        a('s_mov_b64 exec, 0xffff')
        a.wait_vm0()
        a(f'v_cmp_eq_u32 vcc, 0, v{VCN}')
        a(f's_cbranch_vccnz k2_pwait{cls}')
        a(f'k2_pok{cls}:')
        with a.ool():
            a(f'k2_pwait{cls}:')
            a('s_mov_b64 exec, vcc')
            a('s_sub_u32 s81, s81, 1')
            a('s_cbranch_scc1 k2_end')
            if cfg.slp: a(f's_sleep {cfg.slp}')
            a(f'buffer_load_dword v{VCN}, v{FLG}, s[4:7], s79 offen sc1')
            a('s_waitcnt vmcnt(0)')
            a(f'v_cmp_eq_u32 vcc, 0, v{VCN}')
            a(f's_cbranch_vccnz k2_pwait{cls}')
            a('s_mov_b64 exec, 0xffff')
            a(f's_branch k2_pok{cls}')
        stamp(a, cfg, 1, VS)
        a(f'v_and_b32 v{VSO}, 0xffff, v{VCN}')
        a(f'v_lshrrev_b32 v{VCN}, 16, v{VCN}')
        a(f'v_lshl_add_u32 v{VSO}, v{VSO}, 2, v6')
        a(f'v_min_u32 v{T}, 63, v{VCN}')
        for j in order:
            a(f'v_readlane_b32 s{36+j}, v{VSO}, {j}')
            a(f'v_readlane_b32 s{20+j}, v{T}, {j}')
        if cfg.pbar: a('s_barrier')
    def tree(sr, lab):
        def node(lo, bit):
            if bit < 0: a(f's_branch {lab}{lo}'); return
            a(f's_bitcmp1_b32 s{sr}, {bit}')
            if bit == 0:
                a(f's_cbranch_scc1 {lab}{lo+1}')
                if lo: a(f's_branch {lab}{lo}')
                return
            a(f's_cbranch_scc1 {lab}_n{lo + (1 << bit)}_{bit-1}')
            todo.append((lo + (1 << bit), bit - 1))
            node(lo, bit - 1)
        todo = []
        node(0, 3)
        with a.ool():
            while todo:
                lo, bit = todo.pop()
                a(f'{lab}_n{lo}_{bit}:')
                node(lo, bit)
    def PL():
        RAW, VT = 86, 85
        A_, P_, Q_, INV, RDY, TM = 52, 53, 54, 55, 56, 57
        a(f's_mov_b32 s{A_}, 0')
        a(f's_mov_b32 s{P_}, 0')
        a(f's_mov_b32 s{RDY}, 0')
        a(f's_mov_b32 s{INV}, 0xffff')
        a('s_mov_b64 exec, 0xffff')
        a(f'buffer_load_dword v{RAW}, v{FLG}, s[4:7], s79 offen sc1')
        a('pl_top:')
        a(f's_mov_b32 exec_lo, s{INV}')
        a('s_mov_b32 exec_hi, 0')
        a(f's_mov_b32 s{Q_}, s{A_}')
        a.wait_vm0()
        a(f'v_cmp_ne_u32 vcc, 0, v{RAW}')
        a(f's_and_b32 s{TM}, vcc_lo, s{INV}')
        a('s_cbranch_scc0 pl_none')
        a(f's_or_b32 s{RDY}, s{RDY}, s{TM}')
        a(f's_andn2_b32 s{INV}, s{INV}, s{TM}')
        a(f's_cselect_b32 s58, {cfg.th}, 0')
        a(f's_bcnt1_i32_b32 s{TM}, s{RDY}')
        a(f's_cmp_lt_u32 s{TM}, s58')
        a('s_cbranch_scc1 pl_none')
        a(f's_mov_b32 exec_lo, s{RDY}')
        a(f'v_and_b32 v{VSO}, 0xffff, v{RAW}')
        a(f'v_lshrrev_b32 v{VCN}, 16, v{RAW}')
        a(f'v_lshl_add_u32 v{VSO}, v{VSO}, 2, v6')
        a(f'v_min_u32 v{VT}, 63, v{VCN}')
        a(f's_add_u32 s{A_}, s{A_}, s{TM}')
        stamp(a, cfg, 1, VS)
        tree(Q_, 'pl_L')
        for j in range(16):
            a(f'pl_L{j}:')
            a(f's_ff1_i32_b32 s{TM}, s{RDY}')
            a(f's_bitset0_b32 s{RDY}, s{TM}')
            a(f'v_readlane_b32 s{36+j}, v{VSO}, s{TM}')
            a(f'v_readlane_b32 s{20+j}, v{VT}, s{TM}')
            L(j)
            if j < 15:
                a(f's_cmp_eq_u32 s{RDY}, 0')
                a('s_cbranch_scc1 pl_Lend')
        a.vm = []
        a('pl_Lend:')
        stamp(a, cfg, 2, VS)
        a(f's_cmp_eq_u32 s{INV}, 0')
        a('s_cbranch_scc1 pl_S')
        a('pl_poll:')
        a(f's_mov_b32 exec_lo, s{INV}')
        a('s_mov_b32 exec_hi, 0')
        a(f'buffer_load_dword v{RAW}, v{FLG}, s[4:7], s79 offen sc1')
        a('pl_S:')
        a(f's_cmp_eq_u32 s{P_}, s{Q_}')
        a('s_cbranch_scc1 pl_top')
        with a.ool():
            a('pl_none:')
            a(f's_cmp_eq_u32 s{INV}, 0')
            a('s_cbranch_scc1 pl_S2')
            a(f's_cmp_lg_u32 s{P_}, s{Q_}')
            a('s_cbranch_scc1 pl_poll')
            a('s_sub_u32 s81, s81, 1')
            a('s_cbranch_scc1 k2_end')
            if cfg.slp: a(f's_sleep {cfg.slp}')
            a('s_branch pl_poll')
        a('pl_S2:')
        for nm, f in (('pl_A', SA), ('pl_W', lambda j: SW(j, 'P'))):
            tree(P_, nm)
            for j in range(16):
                a(f'{nm}{j}:')
                f(j)
                if j < 15:
                    a(f's_cmp_eq_u32 s{Q_}, {j+1}')
                    a(f's_cbranch_scc1 {nm}end')
            a(f'{nm}end:')
            if nm == 'pl_A': a.wait_lg0()
        a(f's_mov_b32 s{P_}, s{Q_}')
        a(f's_cmp_lt_u32 s{Q_}, 16')
        a('s_cbranch_scc1 pl_top')
    def LEFT(cls):
        a('s_mov_b64 exec, 0xffff')
        a(f'v_cmp_lt_u32 vcc, 63, v{VCN}')
        a(f's_cbranch_vccnz k2_left{cls}')
        a(f'k2_leftr{cls}:')
        with a.ool():
            a(f'k2_left{cls}:')
            a('s_mov_b64 s[36:37], vcc')
            a(f'k2_lj{cls}:')
            a('s_ff1_i32_b64 s38, s[36:37]')
            a('s_bitset0_b64 s[36:37], s38')
            a(f'v_readlane_b32 s39, v{VSO}, s38')
            a(f'v_readlane_b32 s40, v{VCN}, s38')
            a('s_nop 4')
            a('s_sub_u32 s40, s40, 63')
            a(f'k2_lc{cls}:')
            a('s_add_u32 s39, s39, 252')
            a('s_lshr_b32 s41, s39, 2')
            a('s_min_u32 s42, s40, 63')
            a('s_bfm_b64 exec, s42, 0')
            a(f'buffer_load_dword v{T+11}, v1, s[4:7], s39 offen sc1')
            a(f'buffer_load_ubyte v{T+12}, v2, s[4:7], s41 offen sc1')
            a('s_waitcnt vmcnt(0)')
            a(f'v_lshlrev_b32 v{T+12}, 2, v{T+12}')
            direct(T + 11, T + 12)
            a('s_sub_u32 s40, s40, s42')
            a('s_cmp_lg_u32 s40, 0')
            a(f's_cbranch_scc1 k2_lc{cls}')
            a('s_cmp_lg_u64 s[36:37], 0')
            a(f's_cbranch_scc1 k2_lj{cls}')
            a(f's_branch k2_leftr{cls}')
    def bar():
        a.wait_lg0(); a('s_barrier')
    def rnd2(x, y):
        a(f'v_cvt_pk_bf16_f32 v{y}, v{x}, v{y}')
        if x != y: a(f'v_lshlrev_b32 v{x}, 16, v{y}')
        a(f'v_and_b32 v{y}, 0xffff0000, v{y}')
    def rndl(l):
        l = list(l)
        while l:
            x = l.pop(0); y = l.pop(0) if l else x
            rnd2(x, y)
    MF = 'v_mfma_f32_4x4x4_16b_bf16'
    def WST(cls=''):
        a('s_cmp_lg_u32 s3, 15')
        a('s_cbranch_scc1 k2_now2' + cls)
        a('s_mov_b32 exec_lo, -1')
        a('s_mov_b32 exec_hi, 0')
        a(f'v_and_b32 v{T}, 31, v0')
        a(f'v_lshlrev_b32 v{T}, 3, v{T}')
        a(f's_waitcnt vmcnt({len(a.vm) - 1 - a.vm.index("mo") if "mo" in a.vm else 63})')
        a(f'ds_write_b64 v{T}, v[{WTS}:{WTS+1}] offset:{WB}')
        a(f'k2_now2{cls}:')
    def PM():
        a('s_mov_b64 exec, -1')
        a(f'v_and_b32 v{T+6}, 1, v0')
        a(f'v_mul_u32_u24 v{T+6}, 0xffff, v{T+6}')
        a(f'v_add_u32 v{T+6}, 1, v{T+6}')
        a(f'v_mul_u32_u24 v{T+6}, 0x3f80, v{T+6}')
        a(f'v_bfe_i32 v{T+7}, v0, 1, 1')
        a(f'v_and_b32 v{T+7}, v{T+7}, v{T+6}')
        a(f'v_xor_b32 v{T+6}, v{T+7}, v{T+6}')
        a.wait(vm=['mo'])
        a(f'v_mov_b32 v{T+8}, v{MO}')
        a(f'v_mov_b32 v{T+9}, v{MO+1}')
        a(f'{MF} v[{MO}:{MO+3}], v[{T+8}:{T+9}], v[{T+6}:{T+7}], 0')
    def PRE(ng):
        a('s_mov_b64 exec, -1')
        a(f'v_and_b32 v{T}, 12, v0')
        a(f'v_lshlrev_b32 v{T+1}, 1, v{T}')
        a(f'v_lshlrev_b32 v{T}, 2, v{T}')
        Wt = ACC
        for q, (ad, off) in enumerate(((T, 64), (T, 128), (T, 72), (T, 136), (T+1, 0), (T+1, 32))):
            a.lds(f'ds_read_b64_tr_b16 v[{Wt+2*q}:{Wt+2*q+1}], v{ad} offset:{WB+off}', f'w{q}')
        a.wait(vm=['dist'])
        a(f'v_lshlrev_b32 v{DI}, 16, v{DI}')
        X = list(range(T + 4, T + 12))
        for r, v in enumerate(X): a(f'v_subrev_f32 v{v}, {hex(CENTERS[r])}, v{DI}')
        rndl(X)
        for v in X: a(f'v_mul_f32 v{v}, v{v}, v{v}')
        rndl(X)
        for v in X: a(f'v_mul_f32 v{v}, 0xc1200000, v{v}')
        rndl(X)
        for v in X: a(f'v_mul_f32 v{v}, 0x3fb8aa3b, v{v}')
        for v in X: a(f'v_exp_f32 v{v}, v{v}')
        for q in range(4): a(f'v_cvt_pk_bf16_f32 v{T+q}, v{X[2*q]}, v{X[2*q+1]}')
        a.wait(lg=['w5'])
        for h in range(2):
            for q, D in enumerate((AA0, AA1, GG)):
                c = '0' if h == 0 else f'v[{D}:{D+3}]'
                a(f'{MF} v[{D}:{D+3}], v[{T+2*h}:{T+2*h+1}], v[{Wt+4*q+2*h}:{Wt+4*q+2*h+1}], {c}')
        if not cfg.lm: PM()
        a(f'v_lshrrev_b32 v{T+4}, 4, v0')
        a(f'v_and_b32 v{T+5}, 3, v0')
        a(f'v_lshl_add_u32 v{T+4}, v{T+4}, 2, v{T+5}')
        a(f'v_bfe_u32 v{T+5}, v0, 2, 2')
        a(f'v_mul_u32_u24 v{T+5}, {RC//4}, v{T+5}')
        a(f'v_add_u32 v{T+4}, v{T+4}, v{T+5}')
        a(f'v_lshlrev_b32 v{VAM}, 3, v{T+4}')
        a(f'v_add_u32 v{VAM}, {M64}, v{VAM}')
        a(f'v_and_b32 v{T+4}, -2, v{T+4}')
        a(f'v_lshlrev_b32 v{VAC}, 2, v{T+4}')
        for i in range(ng): a(f'v_add_f32 v{AA1+i}, v{AA1+i}, v{AA1+i}')
        rndl(range(GG, GG + ng))
    def RO(rd, ng, bufs, first, last):
        a('s_mov_b64 exec, -1')
        its = [(i, g) for g in range(caps[rd] // 4) for i in range(ng)]
        nb = len(bufs)
        def rdq(q):
            i, g = its[q]; b = bufs[q % nb]
            a.lds(f'ds_read_b64_tr_b16 v[{b}:{b+1}], v{VAC} offset:{C32 + 1024*i + 4*RC*g}', f'a{q}')
            a.lds(f'ds_read_b64_tr_b16 v[{b+2}:{b+3}], v{VAM} offset:{2048*i + 4*RM*g}', f'b{q}')
        D = min(nb - 1, cfg.rod, len(its))
        for q in range(D): rdq(q)
        if not last:
            a(f'v_lshrrev_b32 v{T}, 6, v0')
            a(f'v_and_b32 v{T+1}, 3, v0')
            a(f'v_lshl_add_u32 v{T}, v{T}, 2, v{T+1}')
            a(f'v_bfe_u32 v{T+1}, v0, 2, 4')
            a(f'v_mul_u32_u24 v{T+1}, {RC}, v{T+1}')
            a(f'v_min_u32 v{T+2}, {RC//16 - 1 - 128}, v{T}')
            a(f'v_lshl_add_u32 v{T}, v{T}, 4, v{T+1}')
            a(f'v_lshl_add_u32 v{T+2}, v{T+2}, 4, v{T+1}')
            for k in range(4): a(f'v_mov_b32 v{T+4+k}, 0')
        for q, (i, g) in enumerate(its):
            b = bufs[q % nb]
            if q + D < len(its): rdq(q + D)
            if q + D == len(its) - 1 or (q == 0 and D == len(its)):
                if last:
                    for k in range(ng): a.lds(f'ds_read_b64 v[{T+2*k}:{T+2*k+1}], v{VSO} offset:{8192*k}', f'f{k}')
                else:
                    for k in range(ng): a.lds(f'ds_write_b128 v{T+2 if k == 2 else T}, v[{T+4}:{T+7}] offset:{C32 + 1024*k}')
            a.wait(lg=[f'b{q}'])
            c = '0' if (first and g == 0) else f'v[{ACC+4*i}:{ACC+4*i+3}]'
            a(f'{MF} v[{ACC+4*i}:{ACC+4*i+3}], v[{b}:{b+1}], v[{b+2}:{b+3}], {c}')
    WD = WU = None
    def FINA(r0, r1):
        a('s_mov_b64 exec, -1')
        a(f'v_and_b32 v{T}, 12, v0')
        a(f'v_lshlrev_b32 v{T}, 1, v{T}')
        a.lds(f'ds_read_b64_tr_b16 v[{r0+2}:{r0+3}], v{T} offset:{WB+192}', 'wd')
        a.lds(f'ds_read_b64_tr_b16 v[{r1+2}:{r1+3}], v{T} offset:{WB+224}', 'wu')
        a(f'v_lshlrev_b32 v{VSO}, 3, v0')
        a(f'v_add_u32 v{VSO}, {FB}, v{VSO}')
        a(f'v_lshlrev_b32 v{VCN}, 1, v0')
        a('s_add_u32 s18, s2, 4096')
        a('s_mov_b32 s16, 0xf0f0f0f0')
        a('s_mov_b32 s17, 0xf0f0f0f0')
        a.wait(lg=['wu'])
        for r in (r0, r1):
            a(f'v_lshlrev_b32 v{r}, 16, v{r+2}')
            a(f'v_and_b32 v{r+1}, 0xffff0000, v{r+2}')
            a(f'v_lshlrev_b32 v{r+2}, 16, v{r+3}')
            a(f'v_and_b32 v{r+3}, 0xffff0000, v{r+3}')
    def FIN(ng, r0, r1):
        GR = range(ng)
        qp = lambda k: f'quad_perm:[{k},{k},{k},{k}] row_mask:0xf bank_mask:0xf'
        for i in GR:
            for l in range(2): a(f'v_cndmask_b32 v{ACC+4*i+l}, v{ACC+4*i+l}, v{ACC+4*i+2+l}, s[16:17]')
        a.wait(lg=[f'f{ng-1}'])
        for i in GR:
            for l in range(2): a(f'v_add_f32 v{ACC+4*i+l}, v{ACC+4*i+l}, v{T+2*i+l}')
        for k in range(4):
            for i in GR:
                for l in range(2):
                    a(f'{"v_mul_f32_dpp" if k == 0 else "v_fmac_f32_dpp"} v{ACC+4*i+2+l}, v{ACC+4*i+l}, v{r0+k} {qp(k)}')
        for i in GR: a(f'v_mul_f32 v{T+i}, v{AA0+i}, v{ACC+4*i+2}')
        for i in GR: a(f'v_fmac_f32 v{T+i}, v{AA1+i}, v{ACC+4*i+3}')
        rndl(T + i for i in GR)
        U = T + 4
        for k in range(4):
            for i in GR: a(f'{"v_mul_f32_dpp" if k == 0 else "v_fmac_f32_dpp"} v{U+i}, v{T+i}, v{r1+k} {qp(k)}')
        rndl(U + i for i in GR)
        for i in GR: a(f'v_mul_f32 v{U+i}, v{U+i}, v{GG+i}')
        rndl(U + i for i in GR)
        for i in GR: a(f'v_add_f32 v{U+i}, v{U+i}, v{MO+i}')
        a(f'v_cvt_pk_bf16_f32 v{U}, v{U}, v{U+1}')
        a.vmem(f'buffer_store_short v{U}, v{VCN}, s[12:15], s2 offen', 'st')
        a.vmem(f'buffer_store_short_d16_hi v{U}, v{VCN}, s[12:15], s2 offen offset:2048', 'st')
        if ng == 3:
            a(f'v_cvt_pk_bf16_f32 v{U+2}, v{U+2}, v{U+2}')
            a('v_cmpx_gt_u32 vcc, 452, v0')
            a.vmem(f'buffer_store_short v{U+2}, v{VCN}, s[12:15], s18 offen', 'st')
    def LM():
        a('s_mov_b64 exec, -1')
        if not cfg.nold & 2: a.vmem(f'buffer_load_dwordx2 v[{MO}:{MO+1}], v{MO}, s[8:11], s2 offen', 'mo')
    def LD(cls=''):
        a('s_mov_b64 exec, -1')
        a(f'v_and_b32 v{T}, 3, v0')
        a(f'v_lshrrev_b32 v{T+1}, 2, v0')
        a(f'v_lshl_add_u32 v{T}, v{T}, 8, v{T+1}')
        a(f'v_min_u32 v{T}, 624, v{T}')
        a('s_lshr_b32 s0, s2, 2')
        a(f'v_lshl_add_u32 v{T+1}, v{T}, 1, s0')
        if not cfg.nold & 1: a.vmem(f'global_load_ushort v{DI}, v{T+1}, s[68:69]', 'dist')
        a(f'v_lshlrev_b32 v{MO}, 3, v{T}')
        if not cfg.lm: LM()
        if not cfg.nold & 4:
            a('s_cmp_lg_u32 s3, 15')
            a('s_cbranch_scc1 k2_now' + cls)
            a(f'v_and_b32 v{T}, 63, v0')
            a(f'v_lshlrev_b32 v{T}, 3, v{T}')
            a('s_mov_b32 exec_hi, 0')
            for msk, p, o in ((0xff, 60, 0), (0xffff00, 62, -64), (0xf000000, 64, -192), (0xf0000000, 66, -224)):
                a(f's_mov_b32 exec_lo, {hex(msk)}')
                a(f'global_load_dwordx2 v[{WTS}:{WTS+1}], v{T}, s[{p}:{p+1}] offset:{o}')
            a(f'k2_now{cls}:')
    def ZM(lo, hi):
        a('s_mov_b64 exec, -1')
        a(f'v_lshlrev_b32 v{T}, 4, v0')
        a(f'v_add_u32 v{T}, {lo}, v{T}')
        for k in range(4): a(f'v_mov_b32 v{T+4+k}, 0')
        n = (hi - lo) // 16
        for k in range((n + 1023) // 1024):
            if n - 1024*k < 1024: a(f'v_cmpx_gt_u32 vcc, {n - 1024*k}, v0')
            a.lds(f'ds_write_b128 v{T}, v[{T+4}:{T+7}] offset:{16384*k}')

    OUT, IN, ANG, BIN, RK, BS, VS1, WTS, CTR = 4, 14, 24, 30, 40, 50, 122, 76, 78
    S_ = 60; FLG = 84 if cfg.pl else R(4)
    KC, KB = BK, BK + 4 * 1028
    RB_, RD_, X_ = ZB, ZB + 10240, 16384
    assert KB % 16 == 0 and RD_ + 40000 <= FB and RB_ - X_ <= 65535 and 0 <= RD_ - 4 * X_ <= 65535
    def ex1000():
        a('s_mov_b64 exec, s[76:77]')
    def head():
        a('s_cmp_ge_u32 s2, 256')
        a('s_cbranch_scc1 k2_end')
        a('s_load_dwordx2 s[16:17], s[0:1], 16')
        a('s_load_dwordx2 s[4:5], s[0:1], 104')
        a('s_load_dwordx2 s[20:21], s[0:1], 8')
        a('s_load_dwordx2 s[24:25], s[0:1], 32')
        a('s_load_dwordx2 s[8:9], s[0:1], 0')
        a('s_load_dwordx2 s[12:13], s[0:1], 88')
        a('s_load_dwordx8 s[60:67], s[0:1], 56')
        a('s_load_dwordx2 s[68:69], s[0:1], 24')
        a('s_load_dwordx2 s[70:71], s[0:1], 96')
        if cfg.diag:
            a(f'v_mov_b32 v{VS}, 0')
            a(f'v_mov_b32 v{VS1}, 0')
        stamp(a, cfg, 0, VS1)
        srd(a, 16, 10240000); srd(a, 20, 10240000); srd(a, 24, 5120000)
        srd(a, 4, WSZ); srd(a, 8, 1280000); srd(a, 12, 1280004)
        a('v_lshrrev_b32 v3, 6, v0')
        a('v_lshlrev_b32 v1, 3, v0')
        a('v_lshlrev_b32 v2, 2, v0')
        a('v_readfirstlane_b32 s3, v3')
        a('s_mov_b32 s78, s2')
        a('s_mul_i32 s40, s2, 40000')
        for c in range(1, 5): a(f's_add_u32 s{40+c}, s40, {8000*c}')
        for c in range(5): a(f's_lshr_b32 s{45+c}, s{40+c}, 1')
        a('s_and_b32 s79, s2, 7')
        a('s_lshl_b32 s79, s79, 5')
        a('s_lshr_b32 s80, s2, 3')
        a('s_add_u32 s79, s79, s80')
        a('s_mul_i32 s2, s79, 5000')
        a(f's_and_b32 s82, s79, {(1 << cfg.tg) - 1}')
        a(f's_lshr_b32 s79, s79, {cfg.tg}')
        a(f's_lshl_b32 s79, s79, {8 + cfg.tg}')
        a('s_add_u32 s79, s79, s82')
        a('s_lshl_b32 s79, s79, 2')
        a(f's_add_u32 s79, s79, {OFFB}')
        a(f's_mul_i32 s80, s80, {cfg.rot}')
        a('v_cmp_gt_u32 s[76:77], s3, v0' if False else 'v_cmp_gt_u32 vcc, 1000, v0')
        a('s_mov_b64 s[76:77], vcc')
        a(f'v_mov_b32 v{ZR}, 0')
        a.wait_lg0()
        a(f's_mov_b32 s81, {cfg.spin}')
        a('s_cmp_ge_u32 s78, 16')
        a('s_cbranch_scc1 k1_noclr')
        a('s_lshl_b32 s0, s78, 14')
        a(f's_add_u32 s0, s0, {OFFB}')
        for k in range(4): a(f'v_mov_b32 v{T+4+k}, 0')
        a(f'v_lshlrev_b32 v{T}, 4, v0')
        a(f'buffer_store_dwordx4 v[{T+4}:{T+7}], v{T}, s[4:7], s0 offen sc1')
        a('k1_noclr:')
        ex1000()
    def INJ():
        a('s_mov_b64 exec, -1')
        a(f'v_and_b32 v{T+2}, 63, v0')
        a(f'v_mul_u32_u24 v{T+2}, 1028, v{T+2}')
        a(f'v_subrev_u32 v{T}, s80, v0')
        a(f'v_and_b32 v{T}, 255, v{T}')
        a(f'v_lshlrev_b32 v{T}, 2, v{T}')
        a('v_cmpx_gt_u32 vcc, 640, v0')
        for r in range(NR): a.lds(f'ds_write_b32 v2, v2 offset:{CNT[r]}')
        a('v_cmpx_gt_u32 vcc, 256, v0')
        a.lds(f'ds_write_b32 v2, v{T} offset:{BC}')
        a('v_cmpx_gt_u32 vcc, 64, v0')
        a.lds(f'ds_write_b32 v{T+2}, v{ZR} offset:{BK+1024}')
        ZM(FB, LDS)
        ex1000()
    def INI():
        a('v_cmpx_gt_u32 vcc, 256, v0')
        a.lds(f'ds_write_b32 v2, v{ZR} offset:{KC}')
        ex1000()
        a('v_mov_b32 v3, 1')
        a(f'v_mov_b32 v73, {f2h(SCALE)}')
        a('s_mov_b32 s72, 6871948')
        a('s_mov_b32 s73, -625')
        a('s_mov_b32 s74, 0xfffff')
        a(f's_mul_i32 s50, s78, {STRIDE}')
        a('s_lshr_b32 s51, s50, 2')
        a(f's_add_u32 s51, s51, {DOFF + BBASE}')
        a(f's_add_u32 s50, s50, {DOFF - 10240}')
        a('s_cmp_lt_u32 s3, 10')
        a('s_cselect_b32 s54, s51, s50')
        for i in range(1, 4): a(f's_add_u32 s{50+i}, s50, {16384*i}')
    def SIG():
        a.wait_lg0()
        a('s_cmp_lt_u32 s78, 16')
        a('s_cbranch_scc1 k1_sig')
        a('s_barrier')
        a('k1_sigr:')
        n = len(a.vm)
        with a.ool():
            a('k1_sig:')
            a(f's_waitcnt vmcnt({n})')
            a('s_barrier')
            a('s_cmp_lg_u32 s3, 0')
            a('s_cbranch_scc1 k1_sigr')
            a('s_lshl_b32 s0, s78, 2')
            a(f'v_mov_b32 v{S_+4}, s0')
            a('s_mov_b64 exec, 1')
            a(f'global_store_dword v{S_+4}, v3, s[70:71] sc1')
            a('s_mov_b64 exec, -1')
            a('s_branch k1_sigr')
    def PF():
        a('s_getpc_b64 s[84:85]')
        a('k1_pf:')
        a(f's_sub_u32 s84, s84, k1_pf-{NAME}_kernel')
        a('s_subb_u32 s85, s85, 0')
        a('s_lshr_b32 s87, s78, 3')
        a('s_lshl_b32 s87, s87, 4')
        a('s_add_u32 s87, s87, s3')
        a('s_and_b32 s87, s87, 255')
        a('s_lshl_b32 s87, s87, 7')
        a(f's_min_u32 s87, s87, k_last-{NAME}_kernel')
        a('s_load_dword s86, s[84:85], s87')
    def FA():
        a('s_cmp_lg_u32 s3, 0')
        a('s_cbranch_scc1 k1_nofa')
        a('s_mov_b64 exec, 0xffff')
        a(f'v_lshlrev_b32 v{CTR}, 2, v0')
        a(f'global_load_dword v{CTR}, v{CTR}, s[70:71] sc1' if not cfg.nold & 8 else f'v_mov_b32 v{CTR}, 1')
        if 'CO' in pre_seen: a('s_mov_b64 exec, -1')
        else: ex1000()
        a('k1_nofa:')
    def ld_out(c): a.vmem(f'buffer_load_dwordx2 v[{OUT+2*c}:{OUT+2*c+1}], v1, s[16:19], s{40+c} offen{cfg.ldnt}', f'o{c}')
    def ld_in(c): a.vmem(f'buffer_load_dwordx2 v[{IN+2*c}:{IN+2*c+1}], v1, s[20:23], s{40+c} offen{cfg.ldnt}', f'i{c}')
    def ld_ang(c): a.vmem(f'buffer_load_dword v{ANG+c}, v2, s[24:27], s{45+c} offen{cfg.ldnt}', f'a{c}')
    def rank(c):
        a.wait(vm=[f'o{c}'])
        for i in (2*c, 2*c+1):
            a(f'v_mul_hi_u32_u24 v{BIN+i}, s72, v{OUT+i}')
            a(f'v_mad_i32_i24 v{OUT+i}, v{BIN+i}, s73, v{OUT+i}')
            a(f'v_lshlrev_b32 v{BIN+i}, 2, v{BIN+i}')
            a.lds(f'ds_add_rtn_u32 v{RK+i}, v{BIN+i}, v3 offset:{KC}', f'r{i}')
    def scan():
        a.wait_lg0()
        stamp(a, cfg, 1, VS1)
        a('s_barrier')
        a('s_cmp_lg_u32 s3, 0')
        a(f's_cbranch_scc1 k1_noscan')
        T = S_
        a(f'v_lshlrev_b32 v{T+12}, 4, v0')
        a(f'ds_read_b128 v[{T}:{T+3}], v{T+12} offset:{KC}')
        a('s_waitcnt lgkmcnt(0)')
        a(f'v_add_u32 v{T+5}, v{T}, v{T+1}')
        a(f'v_add_u32 v{T+6}, v{T+5}, v{T+2}')
        a(f'v_add_u32 v{T+7}, v{T+6}, v{T+3}')
        a(f'v_mov_b32 v{T+4}, v{T+7}')
        a(f'v_subrev_u32 v{T+7}, {X_}, v{T+7}')
        for d in ('row_shr:1 row_mask:0xf', 'row_shr:2 row_mask:0xf', 'row_shr:4 row_mask:0xf', 'row_shr:8 row_mask:0xf',
                  'row_bcast:15 row_mask:0xa', 'row_bcast:31 row_mask:0xc'):
            a(f'v_add_u32_dpp v{T+4}, v{T+4}, v{T+4} {d} bank_mask:0xf')
        a(f'v_sub_u32 v{T+4}, v{T+4}, v{T+7}')
        a(f'v_add_u32 v{T+7}, v{T+4}, v{T+6}')
        a(f'v_add_u32 v{T+6}, v{T+4}, v{T+5}')
        a(f'v_add_u32 v{T+5}, v{T+4}, v{T}')
        a(f'ds_write_b128 v{T+12}, v[{T+4}:{T+7}] offset:{KB}')
        for i in range(4): a(f'v_lshl_or_b32 v{T+i}, v{T+i}, 16, v{T+4+i}')
        a('s_waitcnt lgkmcnt(0)')
        a('s_barrier')
        if 'SIG' not in pre_seen:
            a('s_cmp_ge_u32 s78, 16')
            a('s_cbranch_scc1 k1_scanned')
            a('s_lshl_b32 s0, s78, 2')
            a(f'v_mov_b32 v{T+4}, s0')
            a('s_mov_b64 exec, 1')
            a(f'global_store_dword v{T+4}, v3, s[70:71] sc1')
            a('s_mov_b64 exec, -1')
        a('s_branch k1_scanned')
        a(f'k1_noscan:')
        a('s_barrier')
        a('k1_scanned:')
        for i in range(10): a.lds(f'ds_read_b32 v{BS+i}, v{BIN+i} offset:{KB}', f'b{i}')
        stamp(a, cfg, 2, VS1)
    def enc(c):
        T = 74
        a.wait(vm=[f'i{c}'])
        for h in range(2):
            i = 2*c + h
            a(f'v_mul_hi_u32_u24 v{T+h}, s72, v{IN+i}')
            a(f'v_mad_i32_i24 v{IN+i}, v{T+h}, s73, v{IN+i}')
            a(f'v_lshl_or_b32 v{OUT+i}, v{IN+i}, 10, v{OUT+i}')
            a(f'v_mov_b32 v{IN+i}, v{T+h}')
        a.wait(vm=[f'a{c}'])
        a(f'v_lshlrev_b32 v{T}, 16, v{ANG+c}')
        a(f'v_and_b32 v{T+1}, 0xffff0000, v{ANG+c}')
        for h in range(2): a(f'v_mul_f32 v{T+h}, 0.15915494, v{T+h}')
        for h in range(2): a(f'v_fract_f32 v{T+h}, v{T+h}')
        for h in range(2): a(f'v_cos_f32 v{T+h}, v{T+h}')
        for h in range(2): a(f'v_fmaak_f32 v{T+h}, v73, v{T+h}, 0x49000000')
        for h in range(2): a(f'v_cvt_i32_f32 v{T+h}, v{T+h}')
        for h in range(2): a(f'v_sub_u32 v{T+h}, v{T+h}, v{OUT+2*c+h}')
        for h in range(2): a(f'v_bfi_b32 v{OUT+2*c+h}, s74, v{OUT+2*c+h}, v{T+h}')
    def wr(c):
        for i in (2*c, 2*c+1):
            a.wait(lg=[f'b{i}'])
            a(f'v_add_u32 v{RK+i}, v{RK+i}, v{BS+i}')
            a(f'v_lshlrev_b32 v{BS+i}, 2, v{RK+i}')
            a.lds(f'ds_write_b8 v{RK+i}, v{IN+i} offset:{RB_ - X_}')
            a.lds(f'ds_write_b32 v{BS+i}, v{OUT+i} offset:{RD_ - 4*X_}')
    def copyout():
        a.wait_lg0()
        stamp(a, cfg, 3, VS1)
        a('s_mov_b64 exec, -1')
        a('v_lshlrev_b32 v1, 4, v0')
        a(f'v_add_u32 v2, {RB_}, v1')
        a('v_subrev_u32 v3, 632, v0')
        a('s_barrier')
        for i in range(4): a.lds(f'ds_read_b128 v[{4+4*i}:{7+4*i}], v2 offset:{16384*i}', f'c{i}')
        for i in range(4):
            if i == 0: a('v_cmpx_le_u32 vcc, 8, v3')
            if i == 1: a('s_mov_b64 exec, -1')
            if i == 3:
                a(f'v_cmpx_gt_u32 vcc, {3140-3072}, v0')
                a(f's_cbranch_execz k1_skip')
            a.wait(lg=[f'c{i}'])
            a.vmem(f'buffer_store_dwordx4 v[{4+4*i}:{7+4*i}], v1, s[4:7], s{50+i if i else 54} offen{cfg.stf}', f's{i}')
        a(f'k1_skip:')
        a('s_mov_b64 exec, -1')
        a.wait_lg0()
    def seam():
        stamp(a, cfg, 4, VS1)
        a('v_lshrrev_b32 v4, 6, v0')
        a('v_and_b32 v5, 63, v0')
        a('v_lshlrev_b32 v1, 2, v5')
        a(f'v_add_u32 v2, {BBASE + DOFF*3//4}, v5')
        a('v_mov_b32 v3, 1028')
        a('v_lshl_add_u32 v6, v4, 4, v5')
        a(f'v_mul_u32_u24 v6, {STRIDE}, v6')
        a(f'v_add_u32 v6, {DOFF - 4*X_}, v6')
        a('v_lshl_add_u32 v7, v5, 4, v4')
        a('v_add_u32 v7, s80, v7')
        a('v_and_b32 v7, 255, v7')
        a('v_mul_u32_u24 v5, 1028, v5')
        a('v_lshl_add_u32 v4, v4, 2, v5')
        a(f's_lshl_b32 s0, s3, {6 + cfg.tg}')
        a('s_add_u32 s79, s79, s0')
        a(f'v_lshlrev_b32 v{FLG}, {cfg.tg}, v1')
        if cfg.tg == 2: a(f'v_lshlrev_b32 v{S_+4}, 10, v1')
        else:
            a(f'v_lshrrev_b32 v{S_+4}, {cfg.tg}, v1')
            a(f'v_and_b32 v{S_+5}, {(1 << cfg.tg) - 1}, v1')
            a(f'v_lshl_add_u32 v{S_+4}, v{S_+4}, {8 + cfg.tg}, v{S_+5}')
            a(f'v_lshlrev_b32 v{S_+4}, 2, v{S_+4}')
        a(f's_lshl_b32 s0, s78, {2 + cfg.tg}')
        a(f's_add_u32 s0, s0, {OFFB}')
        if late_ld:
            a('s_cmp_eq_u32 s3, 15')
            a('s_cbranch_scc1 k1_w15')
            a('s_waitcnt vmcnt(2)')
            a('k1_w15:')
            a('s_waitcnt vmcnt(6)')
        else: a.wait_vm0()
        if cfg.wseam:
            assert not late_ld and 'LD' in pre_seen
            WST(); a('s_mov_b64 exec, -1'); a.wait_lg0()
        stamp(a, cfg, 5, VS1, True)
        a('s_cmp_lg_u32 s3, 0')
        a('s_cbranch_scc1 k1_nofl')
        a('s_mov_b64 exec, 0xffff')
        a('k1_cchk:')
        a(f'v_cmp_ne_u32 vcc, 1, v{CTR}')
        a('s_cbranch_vccnz k1_cwait')
        a('s_mov_b64 exec, -1')
        a('s_barrier')
        a(f'buffer_store_dwordx4 v[{S_}:{S_+3}], v{S_+4}, s[4:7], s0 offen sc1')
        a('s_branch k1_fl')
        a('k1_nofl:')
        a('s_barrier')
        a('k1_fl:')
        stamp(a, cfg, 0, VS)
        with a.ool():
            a('k1_cwait:')
            a('s_sub_u32 s81, s81, 1')
            a('s_cbranch_scc1 k2_end')
            a('s_sleep 4')
            a(f'global_load_dword v{CTR}, v1, s[70:71] sc1')
            a('s_waitcnt vmcnt(0)')
            a('s_branch k1_cchk')
    def SCOUT(cls):
        a(f's_cmp_lg_u32 s3, {cfg.sw}')
        a(f's_cbranch_scc1 k2_scr{cls}')
        a('s_mov_b64 exec, 0xffff')
        a(f'k2_sc{cls}:')
        a(f'buffer_load_dword v{VCN}, v{FLG}, s[4:7], s79 offen sc1')
        a('s_waitcnt vmcnt(0)')
        a(f'v_cmp_eq_u32 vcc, 0, v{VCN}')
        a('s_mov_b64 exec, vcc')
        a('s_bcnt1_i32_b32 s0, vcc_lo')
        a(f's_cmp_le_u32 s0, {16 - cfg.sk}')
        a(f's_cbranch_scc1 k2_scr{cls}')
        a('s_sub_u32 s81, s81, 1')
        a('s_cbranch_scc1 k2_end')
        if cfg.sslp: a(f's_sleep {cfg.sslp}')
        a(f's_branch k2_sc{cls}')
        a(f'k2_scr{cls}:')
        a('s_barrier')
    def POLL():
        a('s_mov_b64 exec, 0xffff')
        a.vmem(f'buffer_load_dword v{VCN}, v{FLG}, s[4:7], s79 offen sc1', 'off')
    head()
    pre_seen = set(); late_ld = False
    for k, c in expand(cfg.sa):
        if k == 'O': ld_out(c)
        elif k == 'I': ld_in(c)
        elif k == 'A': ld_ang(c)
        elif k == 'INI': INI()
        elif k == 'BAR': bar()
        elif k == 'FA': FA()
        elif k == 'PF': PF()
        elif k == 'SIG': assert 'INI' in pre_seen; SIG()
        elif k == 'INJ': INJ()
        elif k == 'SB': a('s_barrier')
        elif k == 'LD':
            LD()
            if 'CO' in pre_seen: late_ld = not cfg.wseam; assert 'FA' in pre_seen; a('s_mov_b64 exec, -1')
            else: ex1000()
        elif k == 'WST': WST(); ex1000()
        elif k == 'R': rank(c)
        elif k == 'SCAN': scan()
        elif k == 'E': enc(c)
        elif k == 'W': wr(c)
        elif k == 'CO': copyout()
        else: raise Exception(k)
        pre_seen.add(k)
    assert {'INI', 'INJ', 'FA'} <= pre_seen
    seam()
    if cfg.poll0 and not cfg.pl: POLL()
    if cfg.pl:
        for k, c in expand(cfg.sp):
            if k == 'PL': PL()
            elif k == 'LEFT': LEFT('P')
            elif k == 'SCOUT': SCOUT('P')
            elif k == 'ZM': ZM(ZB, FB); cfg.zm0 = 1
            elif k == 'LD': LD()
            elif k == 'WST': WST()
            elif k == 'BAR': bar()
            elif k == 'ST': stamp(a, cfg, c, VS)
            else: raise Exception(k)
    a('s_cmp_ge_u32 s3, 8')
    a('s_cbranch_scc1 k2_N')
    save = (list(a.vm), list(a.lg))

    def body(cls):
        isR = cls == 'R'; NG = 3 if isR else 2
        cur[0] = rmap if isR else rmapn
        ops = expand((cfg.srt if isR else cfg.snt or cfg.srt) + ' ' + (cfg.sr if isR else cfg.sn or cfg.sr))
        order = [j for k, j in ops if k == 'L']
        assert cfg.pl or sorted(order) == list(range(16))
        gorder = [j for k, j in ops if k == 'G']
        for kk in ('G', 'W') + (() if cfg.pl else ('SA', 'SW')): assert sorted(j for k, j in ops if k == kk) == list(range(16)), kk
        done = set(); nl = 0; ng = 0; seen = {'LEFT'} if cfg.pl else set(); fr = None; left = False
        nro = [j for k, j in ops if k == 'RO']
        assert nro == list(range(NR))
        for k, j in ops:
            if k == 'L':
                if nl == 0: decode(cls, order)
                L(j); nl += 1
            elif k == 'LEFT': assert nl == 16; LEFT(cls)
            elif k == 'G': G(j); ng += 1
            elif k == 'SA': SA(j)
            elif k == 'SW': SW(j, cls)
            elif k == 'DEC': assert 'LEFT' in seen; DEC(gorder)
            elif k == 'W': assert 'ZM' in seen or cfg.zm0; W(j, cls); done.add(j)
            elif k == 'ZM': ZM(ZB, FB)
            elif k == 'PRE': PRE(NG)
            elif k == 'SCOUT': SCOUT(cls)
            elif k == 'LD': LD(cls)
            elif k == 'LM': assert cfg.lm; LM()
            elif k == 'PM': assert cfg.lm and 'LM' in seen; PM()
            elif k == 'WST': WST(cls)
            elif k == 'BAR': bar()
            elif k == 'SB': a('s_barrier')
            elif k == 'ST': stamp(a, cfg, j, VS)
            elif k == 'PRIO': a(f's_setprio {j}')
            elif k == 'RO':
                assert 'PRE' in seen and (j < NR - 1 or fr)
                assert all(x in done for x in range(16) if rnd(x) <= j)
                RO(j, NG, [R(x) for x in sorted(done) if R(x) not in (fr or ())] + [T + 8, T + 12], j == 0, j == NR - 1)
            elif k == 'FINA':
                assert 'LEFT' in seen
                fr = [R(x) for x in sorted(done)][:2]; FINA(*fr)
            elif k == 'FIN': assert 'PM' in seen or not cfg.lm; FIN(NG, *fr)
            else: raise Exception(k)
            seen.add(k)
        if cfg.diag:
            a.wait_vm0()
            stamp(a, cfg, 9, VS, True)
            stamp_out(a, cfg, 0, VS1, 1, 4, 78)
            stamp_out(a, cfg, 1, VS, 1, 4, 78)
        a('s_endpgm')
    body('R')
    a('k2_N:')
    a.vm, a.lg = save
    body('N')
    a('k2_end:')
    a('s_endpgm')
    return a.text(), 124 if cfg.diag else 120, LDS

def desc(name, vg):
    return f'''.amdhsa_kernel {name}
  .amdhsa_next_free_vgpr {vg}
  .amdhsa_next_free_sgpr 102
  .amdhsa_accum_offset {(vg+3)//4*4}
  .amdhsa_group_segment_fixed_size 0
  .amdhsa_kernarg_size 112
  .amdhsa_user_sgpr_count 2
  .amdhsa_user_sgpr_kernarg_segment_ptr 1
  .amdhsa_system_sgpr_workgroup_id_x 1
.end_amdhsa_kernel
'''

def build(cfg):
    t2, v2, l2 = k2(cfg)
    n = NAME + '_kernel'
    s = HDR + f'; @launch grid=(256,1,1) block=(1024,1,1) lds={l2}\n'
    s += '.amdgcn_target "amdgcn-amd-amdhsa--gfx950"\n.text\n'
    s += f'.globl {n}\n.p2align 8\n.type {n},@function\n{n}:\n{t2}k_last:\n    s_endpgm\n'
    s += '.section .rodata,"a"\n.p2align 6\n' + desc(n, v2)
    return s

if __name__ == '__main__':
    ap = argparse.ArgumentParser()
    ap.add_argument('-o', default='cdna_kernels/' + NAME + '.s')
    ap.add_argument('kv', nargs='*')
    x = ap.parse_args()
    cfg = Cfg(); cfg.probe = 0; cfg.probek = 0; cfg.probes = 0; cfg.epre = 0; cfg.epost = 0; cfg.rep = 1; cfg.rep2 = 1
    cfg.caps = '16/16'; cfg.rmap = 'r0000000011111111'; cfg.rod = 5; cfg.lf = ''; cfg.gl = 0
    cfg.exp = 0; cfg.k1pad = 0; cfg.rot = 0; cfg.rbn = 8
    cfg.sa = 'O0-4 INI BAR I,A0-4 INJ R0-4 SCAN LD E,W0-4 WST FA CO'; cfg.poll0 = 1; cfg.pbar = 0; cfg.nrep = 8; cfg.frs = 1024; cfg.slp0 = 4; cfg.spin = 400000; cfg.slp = 0; cfg.lf = ' sc1'
    cfg.zm0 = 0; cfg.rmapn = 0; cfg.snt = ''; cfg.sn = ''; cfg.rod = 7
    cfg.gf = ''; cfg.ld0 = 0
    cfg.ld0 = 1; cfg.rot = 1
    cfg.srt = 'PRE L0-15 LEFT ST2 SA0-1 SA2-15,SW0-13 SW14-15 BAR ST3 DEC'
    cfg.sr = 'G0-2 ZM BAR G3 W0-3,G4-7 SB G8 W4-7 BAR ST5 RO0 G9-10 BAR ST6 G11-12 W8-10,G13-15 FINA W11-15 BAR ST7 RO1 ST8 FIN'
    cfg.sn = 'G0-2 ZM BAR G3 W0-3,G4-7 SB G8 W4-7 BAR ST5 G9-10 RO0 BAR ST6 G11-12 W8-10,G13-15 FINA W11-15 BAR ST7 RO1 ST8 FIN'
    cfg.pl = int('pl=1' in x.kv); cfg.wseam = 0; cfg.lm = 0; cfg.tg = 2; cfg.sw = 15; cfg.sk = 14; cfg.sslp = 4; cfg.nold = 0; cfg.poll0 = 0; cfg.slp = 12
    cfg.sa = 'O0-4 INI SIG I,A0-4 INJ R0-4 SCAN FA LD E,W0-4 WST CO'
    cfg.wseam = 1; cfg.slp = 4; cfg.tg = 5; cfg.lm = 1
    cfg.sa = 'O0-4 INI SIG I,A0-4 INJ R0-4 SCAN LD FA E,W0-4 CO'
    cfg.srt = 'PRE ZM L0-15 LM LEFT ST2 SA0-1 SA2-15,SW0-13 SW14-15 BAR ST3 DEC PM'
    cfg.sr = cfg.sr.replace('ZM ', ''); cfg.sn = cfg.sn.replace('ZM ', '')
    if cfg.pl:
        cfg.sa = 'O0-4 INI BAR I,A0-4 INJ R0-4 SCAN E,W0-4 CO FA LD'
        cfg.sp = 'PL LEFT WST BAR ST3'; cfg.srt = 'DEC'; cfg.slp = 8; cfg.th = 6
        cfg.sr = cfg.sr.replace('G3 W0-3', 'G3 PRE W0-3'); cfg.sn = cfg.sn.replace('G3 W0-3', 'G3 PRE W0-3')
    for kv in x.kv:
        k, v = kv.split('=', 1)
        try: v = int(v, 0)
        except ValueError: v = v.replace('_', ' ')
        setattr(cfg, k, v)
    open(x.o, 'w').write(build(cfg))
```

```python
import sys, argparse
from asmlib import Asm

NAME = 'standalone__molecular_angular_gemnet__graph'
HDR = open('cdna_kernels/' + NAME + '.s.ref').read().split('; Override launch')[0]

STRIDE = 40448
DOFF = 65536
BBASE = 256 * STRIDE
OFFB = DOFF + BBASE + 64 * STRIDE
FLB = OFFB + 262144
SCALE = 2145386496.0
import struct
def f2h(x): return hex(struct.unpack('<I', struct.pack('<f', x))[0])
DIAGB = 64 << 20
WSZ = 0x10000000
CENTERS = [0x00000000, 0x3e120000, 0x3e920000, 0x3edb0000, 0x3f120000, 0x3f370000, 0x3f5b0000, 0x3f800000]

class Cfg:
    nB = 8; n1 = 8; cap = 16; diag = False; sched = 'a'; ldnt = ' nt'; stf = ' sc1'; wsoff = 0

def expand(sched):
    import re
    out = []
    for t in sched.split():
        parts = t.split(',')
        seqs = []
        for p in parts:
            m = re.fullmatch(r'([A-Z]+)(?:(\d+)(?:-(\d+))?)?', p)
            k, lo, hi = m.groups()
            seqs.append((k, None if lo is None else list(range(int(lo), int(hi or lo) + 1))))
        last = seqs[-1][1]
        if last is None: out.append((seqs[0][0], None)); continue
        n = max(len(q or last) for _, q in seqs)
        for i in range(n):
            for k, q in seqs:
                q = q or last
                if i < len(q): out.append((k, q[i]))
    return out

def srd(a, r, size):
    a(f's_mov_b32 s{r+2}, {size}')
    a(f's_mov_b32 s{r+3}, 0x20000')

def stamp(a, cfg, k, vs, clk=False):
    if not cfg.diag: return
    a('s_memrealtime s[100:101]')
    a.wait_lg0()
    a(f'v_writelane_b32 v{vs}, s100, {k}')
    if k == 0 or clk:
        a('s_memtime s[100:101]')
        a.wait_lg0()
        a(f'v_writelane_b32 v{vs}, s100, {14 if k == 0 else 15}')

def stamp_out(a, cfg, kern, vs, vt, wsrd, swg):
    if not cfg.diag: return
    a('s_mov_b64 exec, 0xffff')
    a(f'v_lshrrev_b32 v{vt}, 6, v0')
    a(f'v_lshlrev_b32 v{vt}, 6, v{vt}')
    a(f'v_and_b32 v{vt+1}, 63, v0')
    a(f'v_lshl_add_u32 v{vt}, v{vt+1}, 2, v{vt}')
    a(f's_lshl_b32 s100, s{swg}, 10')
    a(f's_add_u32 s100, s100, {DIAGB + kern * 262144}')
    a(f'buffer_store_dword v{vs}, v{vt}, s[{wsrd}:{wsrd+3}], s100 offen')

def k2(cfg):
    a = Asm()
    caps = [int(x) for x in str(cfg.caps).split('/')]
    rmap = [int(x) for x in str(cfg.rmap)[1:]]
    NR = len(caps); CAP = max(caps)
    RC = 2528; RM = 2 * RC
    BC = 0; WB = 1024
    CNT = [1280 + 2560*r for r in range(NR)]; C32 = 1280 + 2560*NR; M64 = C32 + 16*RC
    FB = M64 + 16*RM
    LDS = FB + 20480
    BK = C32; BKN = 63 * 1028; ZB = BK + 64 * 1028
    assert M64 <= 65535 and LDS <= 163840 and ZB % 16 == 0 and all(c % 4 == 0 and c <= 16 for c in caps)
    R = lambda j: 8 + 4*j
    ACC, AA0, AA1, GG, MO, DI = 72, 84, 88, 92, 96, 119
    VSO, VCN, VAM, VAC, ZR = 100, 101, 5, 119, 118
    T = 102
    VS = 120
    rmapn = [int(x) for x in str(cfg.rmapn or cfg.rmap)[1:]]
    cur = [rmap]
    rnd = lambda j: cur[0][j]
    INVS = f2h(1.0 / SCALE)
    def fbadd(r, e4):
        a(f'v_lshlrev_b32 v{T}, 3, v{e4}')
        a(f'v_add_u32 v{T}, {FB}, v{T}')
        a(f'v_lshlrev_b32 v{T+5}, 16, v{r+2}')
        a(f'v_and_b32 v{T+1}, 0xffff0000, v{r+2}')
        for k in range(4):
            if k & 1: a(f'v_and_b32 v{T+2}, 0xffff0000, v{r+k//2}')
            else: a(f'v_lshlrev_b32 v{T+2}, 16, v{r+k//2}')
            a(f'v_mul_f32 v{T+3}, v{T+5}, v{T+2}')
            a(f'ds_add_f32 v{T}, v{T+3} offset:{8*k}')
            a(f'v_mul_f32 v{T+4}, v{T+1}, v{T+2}')
            a(f'ds_add_f32 v{T}, v{T+4} offset:{8*k+4}')
    def cpair(dst, d, t):
        a(f'v_cvt_f32_i32 v{dst}, v{d}')
        a(f'v_mul_f32 v{dst}, {INVS}, v{dst}')
        a(f'v_fma_f32 v{t}, v{dst}, v{dst}, -0.5')
        a(f'v_cvt_pk_bf16_f32 v{dst}, v{dst}, v{t}')
    def direct(d, b4):
        U = T + 8
        a(f'v_lshrrev_b32 v{T+5}, 7, v{d}')
        a(f'v_and_b32 v{T+5}, 0x1ff8, v{T+5}')
        a(f'v_mul_u32_u24 v{T+6}, 1250, v{b4}')
        a(f'v_add_u32 v{T+5}, v{T+5}, v{T+6}')
        a(f'buffer_load_dwordx2 v[{U}:{U+1}], v{T+5}, s[8:11], 0 offen')
        cpair(U + 2, d, T + 6)
        a(f'v_and_b32 v{T+5}, 0x3ff, v{d}')
        a(f'v_lshlrev_b32 v{T+5}, 2, v{T+5}')
        a('s_waitcnt vmcnt(0)')
        fbadd(U, T + 5)
    def ex(j): a(f's_bfm_b64 exec, s{20+j}, 0')
    def L(j):
        ex(j)
        t = ['vcc_lo', 'vcc_hi'][j & 1]
        a(f's_lshr_b32 {t}, s{36+j}, 2')
        if cfg.exp == 2: a.vmem(f'buffer_load_ubyte v{R(j)+3}, v1, s[4:7], s{36+j} offen{cfg.lf}', f'B{j}')
        elif cfg.exp == 0: a.vmem(f'buffer_load_ubyte v{R(j)+3}, v2, s[4:7], {t} offen{cfg.lf}', f'B{j}')
        a.vmem(f'buffer_load_dword v{R(j)+2}, v1, s[4:7], s{36+j} offen{cfg.lf}', f'L{j}')
    def SA(j):
        ex(j)
        a.wait(vm=[f'B{j}'])
        if cfg.exp:
            a.wait(vm=[f'L{j}'])
            a(f'v_lshrrev_b32 v{R(j)+3}, 10, v{R(j)+2}')
            a(f'v_xor_b32 v{R(j)+3}, v{R(j)+3}, v{R(j)+2}')
            a(f'v_and_b32 v{R(j)+3}, 255, v{R(j)+3}')
        a(f'v_lshlrev_b32 v{R(j)+3}, 2, v{R(j)+3}')
        a.lds(f'ds_add_rtn_u32 v{R(j)}, v{R(j)+3}, v3 offset:{BC}', f's{j}')
    def SW(j, cls):
        ex(j)
        a.wait(vm=[f'L{j}'], lg=[f's{j}'])
        a(f'v_cmp_le_u32 vcc, {BKN}, v{R(j)}')
        a(f's_cbranch_vccnz k2_so{cls}{j}')
        a(f'k2_sor{cls}{j}:')
        a.lds(f'ds_write_b32 v{R(j)}, v{R(j)+2} offset:{BK}')
        with a.ool():
            a(f'k2_so{cls}{j}:')
            a('s_and_saveexec_b64 s[0:1], vcc')
            direct(R(j) + 2, R(j) + 3)
            a('s_andn2_b64 exec, s[0:1], vcc')
            a(f's_branch k2_sor{cls}{j}')
    def DEC(order):
        a('s_mov_b64 exec, 0xffff')
        a(f'v_lshlrev_b32 v{T+1}, 2, v7')
        a.lds(f'ds_read_b32 v{T}, v{T+1} offset:{BC}', 'bc')
        a('s_mov_b64 exec, -1')
        n0 = cfg.rbn
        for j in order[:n0]: a.lds(f'ds_wrxchg_rtn_b32 v{R(j)+2}, v4, v{ZR} offset:{BK+64*j}', f'rb{j}')
        a('v_mul_u32_u24 v7, 5000, v7')
        a(f'v_mov_b32 v3, {RC}')
        a('v_mov_b32 v1, 0x1ff8')
        a('v_mov_b32 v2, 0xffc')
        for j in order: a(f'v_readlane_b32 s{36+j}, v7, {j}')
        a.wait(lg=['bc'])
        a(f'v_min_u32 v{T}, {BKN}, v{T}')
        a(f'v_mul_hi_u32_u24 v{T}, 4177985, v{T}')
        for j in order[n0:]: a.lds(f'ds_wrxchg_rtn_b32 v{R(j)+2}, v4, v{ZR} offset:{BK+64*j}', f'rb{j}')
        for j in order: a(f'v_readlane_b32 s{20+j}, v{T}, {j}')
    def G(j):
        ex(j)
        a.wait(lg=[f'rb{j}'])
        a(f'v_lshrrev_b32 v{T}, 7, v{R(j)+2}')
        a(f'v_and_b32 v{T}, v1, v{T}')
        a.vmem(f'buffer_load_dwordx2 v[{R(j)}:{R(j)+1}], v{T}, s[8:11], s{36+j} offen{cfg.gf}', f'G{j}')
        a(f'v_lshlrev_b32 v{T+1}, 2, v{R(j)+2}')
        a(f'v_and_b32 v{T+1}, v2, v{T+1}')
        a.lds(f'ds_add_rtn_u32 v{R(j)+3}, v{T+1}, v3 offset:{CNT[rnd(j)]}', f'r{j}')
        cpair(R(j) + 2, R(j) + 2, T + 2)
    def W(j, cls):
        ex(j)
        a.wait(vm=[f'G{j}'], lg=[f'r{j}'])
        a(f'v_cmp_le_u32 vcc, {caps[rnd(j)]*RC}, v{R(j)+3}')
        a(f'v_lshlrev_b32 v{T+6}, 1, v{R(j)+3}')
        a(f's_cbranch_vccnz k2_ov{cls}{j}')
        a(f'k2_ovr{cls}{j}:')
        a.lds(f'ds_write_b32 v{R(j)+3}, v{R(j)+2} offset:{C32}')
        a.lds(f'ds_write_b64 v{T+6}, v[{R(j)}:{R(j)+1}] offset:{M64}')
        with a.ool():
            a(f'k2_ov{cls}{j}:')
            a('s_and_saveexec_b64 s[0:1], vcc')
            a(f'v_mov_b32 v{T+5}, {2**32 // RC + 1}')
            a(f'v_mul_hi_u32 v{T+5}, v{T+5}, v{R(j)+3}')
            a(f'v_mul_u32_u24 v{T+5}, {RC}, v{T+5}')
            a(f'v_sub_u32 v{T+5}, v{R(j)+3}, v{T+5}')
            fbadd(R(j), T + 5)
            a('s_andn2_b64 exec, s[0:1], vcc')
            a(f's_branch k2_ovr{cls}{j}')
    def decode(cls, order):
        if not cfg.poll0: POLL()
        a('s_mov_b64 exec, 0xffff')
        a.wait_vm0()
        a(f'v_cmp_eq_u32 vcc, 0, v{VCN}')
        a(f's_cbranch_vccnz k2_pwait{cls}')
        a(f'k2_pok{cls}:')
        with a.ool():
            a(f'k2_pwait{cls}:')
            a('s_mov_b64 exec, vcc')
            a('s_sub_u32 s81, s81, 1')
            a('s_cbranch_scc1 k2_end')
            if cfg.slp: a(f's_sleep {cfg.slp}')
            a(f'buffer_load_dword v{VCN}, v{FLG}, s[4:7], s79 offen sc1')
            a('s_waitcnt vmcnt(0)')
            a(f'v_cmp_eq_u32 vcc, 0, v{VCN}')
            a(f's_cbranch_vccnz k2_pwait{cls}')
            a('s_mov_b64 exec, 0xffff')
            a(f's_branch k2_pok{cls}')
        stamp(a, cfg, 1, VS)
        a(f'v_and_b32 v{VSO}, 0xffff, v{VCN}')
        a(f'v_lshrrev_b32 v{VCN}, 16, v{VCN}')
        a(f'v_lshl_add_u32 v{VSO}, v{VSO}, 2, v6')
        a(f'v_min_u32 v{T}, 63, v{VCN}')
        for j in order:
            a(f'v_readlane_b32 s{36+j}, v{VSO}, {j}')
            a(f'v_readlane_b32 s{20+j}, v{T}, {j}')
        if cfg.pbar: a('s_barrier')
    def tree(sr, lab):
        def node(lo, bit):
            if bit < 0: a(f's_branch {lab}{lo}'); return
            a(f's_bitcmp1_b32 s{sr}, {bit}')
            if bit == 0:
                a(f's_cbranch_scc1 {lab}{lo+1}')
                if lo: a(f's_branch {lab}{lo}')
                return
            a(f's_cbranch_scc1 {lab}_n{lo + (1 << bit)}_{bit-1}')
            todo.append((lo + (1 << bit), bit - 1))
            node(lo, bit - 1)
        todo = []
        node(0, 3)
        with a.ool():
            while todo:
                lo, bit = todo.pop()
                a(f'{lab}_n{lo}_{bit}:')
                node(lo, bit)
    def PL():
        RAW, VT = 86, 85
        A_, P_, Q_, INV, RDY, TM = 52, 53, 54, 55, 56, 57
        a(f's_mov_b32 s{A_}, 0')
        a(f's_mov_b32 s{P_}, 0')
        a(f's_mov_b32 s{RDY}, 0')
        a(f's_mov_b32 s{INV}, 0xffff')
        a('s_mov_b64 exec, 0xffff')
        a(f'buffer_load_dword v{RAW}, v{FLG}, s[4:7], s79 offen sc1')
        a('pl_top:')
        a(f's_mov_b32 exec_lo, s{INV}')
        a('s_mov_b32 exec_hi, 0')
        a(f's_mov_b32 s{Q_}, s{A_}')
        a.wait_vm0()
        a(f'v_cmp_ne_u32 vcc, 0, v{RAW}')
        a(f's_and_b32 s{TM}, vcc_lo, s{INV}')
        a('s_cbranch_scc0 pl_none')
        a(f's_or_b32 s{RDY}, s{RDY}, s{TM}')
        a(f's_andn2_b32 s{INV}, s{INV}, s{TM}')
        a(f's_cselect_b32 s58, {cfg.th}, 0')
        a(f's_bcnt1_i32_b32 s{TM}, s{RDY}')
        a(f's_cmp_lt_u32 s{TM}, s58')
        a('s_cbranch_scc1 pl_none')
        a(f's_mov_b32 exec_lo, s{RDY}')
        a(f'v_and_b32 v{VSO}, 0xffff, v{RAW}')
        a(f'v_lshrrev_b32 v{VCN}, 16, v{RAW}')
        a(f'v_lshl_add_u32 v{VSO}, v{VSO}, 2, v6')
        a(f'v_min_u32 v{VT}, 63, v{VCN}')
        a(f's_add_u32 s{A_}, s{A_}, s{TM}')
        stamp(a, cfg, 1, VS)
        tree(Q_, 'pl_L')
        for j in range(16):
            a(f'pl_L{j}:')
            a(f's_ff1_i32_b32 s{TM}, s{RDY}')
            a(f's_bitset0_b32 s{RDY}, s{TM}')
            a(f'v_readlane_b32 s{36+j}, v{VSO}, s{TM}')
            a(f'v_readlane_b32 s{20+j}, v{VT}, s{TM}')
            L(j)
            if j < 15:
                a(f's_cmp_eq_u32 s{RDY}, 0')
                a('s_cbranch_scc1 pl_Lend')
        a.vm = []
        a('pl_Lend:')
        stamp(a, cfg, 2, VS)
        a(f's_cmp_eq_u32 s{INV}, 0')
        a('s_cbranch_scc1 pl_S')
        a('pl_poll:')
        a(f's_mov_b32 exec_lo, s{INV}')
        a('s_mov_b32 exec_hi, 0')
        a(f'buffer_load_dword v{RAW}, v{FLG}, s[4:7], s79 offen sc1')
        a('pl_S:')
        a(f's_cmp_eq_u32 s{P_}, s{Q_}')
        a('s_cbranch_scc1 pl_top')
        with a.ool():
            a('pl_none:')
            a(f's_cmp_eq_u32 s{INV}, 0')
            a('s_cbranch_scc1 pl_S2')
            a(f's_cmp_lg_u32 s{P_}, s{Q_}')
            a('s_cbranch_scc1 pl_poll')
            a('s_sub_u32 s81, s81, 1')
            a('s_cbranch_scc1 k2_end')
            if cfg.slp: a(f's_sleep {cfg.slp}')
            a('s_branch pl_poll')
        a('pl_S2:')
        for nm, f in (('pl_A', SA), ('pl_W', lambda j: SW(j, 'P'))):
            tree(P_, nm)
            for j in range(16):
                a(f'{nm}{j}:')
                f(j)
                if j < 15:
                    a(f's_cmp_eq_u32 s{Q_}, {j+1}')
                    a(f's_cbranch_scc1 {nm}end')
            a(f'{nm}end:')
            if nm == 'pl_A': a.wait_lg0()
        a(f's_mov_b32 s{P_}, s{Q_}')
        a(f's_cmp_lt_u32 s{Q_}, 16')
        a('s_cbranch_scc1 pl_top')
    def LEFT(cls):
        a('s_mov_b64 exec, 0xffff')
        a(f'v_cmp_lt_u32 vcc, 63, v{VCN}')
        a(f's_cbranch_vccnz k2_left{cls}')
        a(f'k2_leftr{cls}:')
        with a.ool():
            a(f'k2_left{cls}:')
            a('s_mov_b64 s[36:37], vcc')
            a(f'k2_lj{cls}:')
            a('s_ff1_i32_b64 s38, s[36:37]')
            a('s_bitset0_b64 s[36:37], s38')
            a(f'v_readlane_b32 s39, v{VSO}, s38')
            a(f'v_readlane_b32 s40, v{VCN}, s38')
            a('s_nop 4')
            a('s_sub_u32 s40, s40, 63')
            a(f'k2_lc{cls}:')
            a('s_add_u32 s39, s39, 252')
            a('s_lshr_b32 s41, s39, 2')
            a('s_min_u32 s42, s40, 63')
            a('s_bfm_b64 exec, s42, 0')
            a(f'buffer_load_dword v{T+11}, v1, s[4:7], s39 offen sc1')
            a(f'buffer_load_ubyte v{T+12}, v2, s[4:7], s41 offen sc1')
            a('s_waitcnt vmcnt(0)')
            a(f'v_lshlrev_b32 v{T+12}, 2, v{T+12}')
            direct(T + 11, T + 12)
            a('s_sub_u32 s40, s40, s42')
            a('s_cmp_lg_u32 s40, 0')
            a(f's_cbranch_scc1 k2_lc{cls}')
            a('s_cmp_lg_u64 s[36:37], 0')
            a(f's_cbranch_scc1 k2_lj{cls}')
            a(f's_branch k2_leftr{cls}')
    def bar():
        a.wait_lg0(); a('s_barrier')
    def rnd2(x, y):
        a(f'v_cvt_pk_bf16_f32 v{y}, v{x}, v{y}')
        if x != y: a(f'v_lshlrev_b32 v{x}, 16, v{y}')
        a(f'v_and_b32 v{y}, 0xffff0000, v{y}')
    def rndl(l):
        l = list(l)
        while l:
            x = l.pop(0); y = l.pop(0) if l else x
            rnd2(x, y)
    MF = 'v_mfma_f32_4x4x4_16b_bf16'
    def WST(cls=''):
        if cfg.mx:
            a('s_cmp_lt_u32 s3, 12')
            a('s_cbranch_scc1 k2_now2' + cls)
            a('s_lshl_b32 s87, s3, 3')
            a('s_lshr_b32 s87, 0xe0c04000, s87')
            a('s_and_b32 s87, s87, 0xff')
            a('s_bfm_b64 exec, s86, 0')
            a(f'v_add_u32 v{CTR}, s87, v{CTR}')
            assert 'mx' not in a.vm
            a(f'ds_write_b64 v{CTR}, v[{WTS}:{WTS+1}] offset:{WB}')
            a(f'k2_now2{cls}:')
            return
        a('s_cmp_lg_u32 s3, 15')
        a('s_cbranch_scc1 k2_now2' + cls)
        a('s_mov_b32 exec_lo, -1')
        a('s_mov_b32 exec_hi, 0')
        a(f'v_and_b32 v{T}, 31, v0')
        a(f'v_lshlrev_b32 v{T}, 3, v{T}')
        a(f's_waitcnt vmcnt({len(a.vm) - 1 - a.vm.index("mo") if "mo" in a.vm else 63})')
        a(f'ds_write_b64 v{T}, v[{WTS}:{WTS+1}] offset:{WB}')
        a(f'k2_now2{cls}:')
    def PM():
        a('s_mov_b64 exec, -1')
        a(f'v_and_b32 v{T+6}, 1, v0')
        a(f'v_mul_u32_u24 v{T+6}, 0xffff, v{T+6}')
        a(f'v_add_u32 v{T+6}, 1, v{T+6}')
        a(f'v_mul_u32_u24 v{T+6}, 0x3f80, v{T+6}')
        a(f'v_bfe_i32 v{T+7}, v0, 1, 1')
        a(f'v_and_b32 v{T+7}, v{T+7}, v{T+6}')
        a(f'v_xor_b32 v{T+6}, v{T+7}, v{T+6}')
        a.wait(vm=['mo'])
        a(f'v_mov_b32 v{T+8}, v{MO}')
        a(f'v_mov_b32 v{T+9}, v{MO+1}')
        a(f'{MF} v[{MO}:{MO+3}], v[{T+8}:{T+9}], v[{T+6}:{T+7}], 0')
    def PRE(ng):
        a('s_mov_b64 exec, -1')
        a(f'v_and_b32 v{T}, 12, v0')
        a(f'v_lshlrev_b32 v{T+1}, 1, v{T}')
        a(f'v_lshlrev_b32 v{T}, 2, v{T}')
        Wt = ACC
        for q, (ad, off) in enumerate(((T, 64), (T, 128), (T, 72), (T, 136), (T+1, 0), (T+1, 32))):
            a.lds(f'ds_read_b64_tr_b16 v[{Wt+2*q}:{Wt+2*q+1}], v{ad} offset:{WB+off}', f'w{q}')
        a.wait(vm=['dist'])
        a(f'v_lshlrev_b32 v{DI}, 16, v{DI}')
        X = list(range(T + 4, T + 12))
        for r, v in enumerate(X): a(f'v_subrev_f32 v{v}, {hex(CENTERS[r])}, v{DI}')
        rndl(X)
        for v in X: a(f'v_mul_f32 v{v}, v{v}, v{v}')
        rndl(X)
        for v in X: a(f'v_mul_f32 v{v}, 0xc1200000, v{v}')
        rndl(X)
        for v in X: a(f'v_mul_f32 v{v}, 0x3fb8aa3b, v{v}')
        for v in X: a(f'v_exp_f32 v{v}, v{v}')
        for q in range(4): a(f'v_cvt_pk_bf16_f32 v{T+q}, v{X[2*q]}, v{X[2*q+1]}')
        a.wait(lg=['w5'])
        for h in range(2):
            for q, D in enumerate((AA0, AA1, GG)):
                c = '0' if h == 0 else f'v[{D}:{D+3}]'
                a(f'{MF} v[{D}:{D+3}], v[{T+2*h}:{T+2*h+1}], v[{Wt+4*q+2*h}:{Wt+4*q+2*h+1}], {c}')
        if not cfg.lm: PM()
        a(f'v_lshrrev_b32 v{T+4}, 4, v0')
        a(f'v_and_b32 v{T+5}, 3, v0')
        a(f'v_lshl_add_u32 v{T+4}, v{T+4}, 2, v{T+5}')
        a(f'v_bfe_u32 v{T+5}, v0, 2, 2')
        a(f'v_mul_u32_u24 v{T+5}, {RC//4}, v{T+5}')
        a(f'v_add_u32 v{T+4}, v{T+4}, v{T+5}')
        a(f'v_lshlrev_b32 v{VAM}, 3, v{T+4}')
        a(f'v_add_u32 v{VAM}, {M64}, v{VAM}')
        a(f'v_and_b32 v{T+4}, -2, v{T+4}')
        a(f'v_lshlrev_b32 v{VAC}, 2, v{T+4}')
        for i in range(ng): a(f'v_add_f32 v{AA1+i}, v{AA1+i}, v{AA1+i}')
        rndl(range(GG, GG + ng))
    def RO(rd, ng, bufs, first, last):
        a('s_mov_b64 exec, -1')
        its = [(i, g) for g in range(caps[rd] // 4) for i in range(ng)]
        nb = len(bufs)
        def rdq(q):
            i, g = its[q]; b = bufs[q % nb]
            a.lds(f'ds_read_b64_tr_b16 v[{b}:{b+1}], v{VAC} offset:{C32 + 1024*i + 4*RC*g}', f'a{q}')
            a.lds(f'ds_read_b64_tr_b16 v[{b+2}:{b+3}], v{VAM} offset:{2048*i + 4*RM*g}', f'b{q}')
        D = min(nb - 1, cfg.rod, len(its))
        for q in range(D): rdq(q)
        if not last:
            a(f'v_lshrrev_b32 v{T}, 6, v0')
            a(f'v_and_b32 v{T+1}, 3, v0')
            a(f'v_lshl_add_u32 v{T}, v{T}, 2, v{T+1}')
            a(f'v_bfe_u32 v{T+1}, v0, 2, 4')
            a(f'v_mul_u32_u24 v{T+1}, {RC}, v{T+1}')
            a(f'v_min_u32 v{T+2}, {RC//16 - 1 - 128}, v{T}')
            a(f'v_lshl_add_u32 v{T}, v{T}, 4, v{T+1}')
            a(f'v_lshl_add_u32 v{T+2}, v{T+2}, 4, v{T+1}')
            for k in range(4): a(f'v_mov_b32 v{T+4+k}, 0')
        for q, (i, g) in enumerate(its):
            b = bufs[q % nb]
            if q + D < len(its): rdq(q + D)
            if q + D == len(its) - 1 or (q == 0 and D == len(its)):
                if last:
                    for k in range(ng): a.lds(f'ds_read_b64 v[{T+2*k}:{T+2*k+1}], v{VSO} offset:{8192*k}', f'f{k}')
                else:
                    for k in range(ng): a.lds(f'ds_write_b128 v{T+2 if k == 2 else T}, v[{T+4}:{T+7}] offset:{C32 + 1024*k}')
            a.wait(lg=[f'b{q}'])
            c = '0' if (first and g == 0) else f'v[{ACC+4*i}:{ACC+4*i+3}]'
            a(f'{MF} v[{ACC+4*i}:{ACC+4*i+3}], v[{b}:{b+1}], v[{b+2}:{b+3}], {c}')
    WD = WU = None
    def FINA(r0, r1):
        a('s_mov_b64 exec, -1')
        a(f'v_and_b32 v{T}, 12, v0')
        a(f'v_lshlrev_b32 v{T}, 1, v{T}')
        a.lds(f'ds_read_b64_tr_b16 v[{r0+2}:{r0+3}], v{T} offset:{WB+192}', 'wd')
        a.lds(f'ds_read_b64_tr_b16 v[{r1+2}:{r1+3}], v{T} offset:{WB+224}', 'wu')
        a(f'v_lshlrev_b32 v{VSO}, 3, v0')
        a(f'v_add_u32 v{VSO}, {FB}, v{VSO}')
        a(f'v_lshlrev_b32 v{VCN}, 1, v0')
        a('s_add_u32 s18, s2, 4096')
        a('s_mov_b32 s16, 0xf0f0f0f0')
        a('s_mov_b32 s17, 0xf0f0f0f0')
        a.wait(lg=['wu'])
        for r in (r0, r1):
            a(f'v_lshlrev_b32 v{r}, 16, v{r+2}')
            a(f'v_and_b32 v{r+1}, 0xffff0000, v{r+2}')
            a(f'v_lshlrev_b32 v{r+2}, 16, v{r+3}')
            a(f'v_and_b32 v{r+3}, 0xffff0000, v{r+3}')
    def FIN(ng, r0, r1):
        GR = range(ng)
        qp = lambda k: f'quad_perm:[{k},{k},{k},{k}] row_mask:0xf bank_mask:0xf'
        for i in GR:
            for l in range(2): a(f'v_cndmask_b32 v{ACC+4*i+l}, v{ACC+4*i+l}, v{ACC+4*i+2+l}, s[16:17]')
        a.wait(lg=[f'f{ng-1}'])
        for i in GR:
            for l in range(2): a(f'v_add_f32 v{ACC+4*i+l}, v{ACC+4*i+l}, v{T+2*i+l}')
        for k in range(4):
            for i in GR:
                for l in range(2):
                    a(f'{"v_mul_f32_dpp" if k == 0 else "v_fmac_f32_dpp"} v{ACC+4*i+2+l}, v{ACC+4*i+l}, v{r0+k} {qp(k)}')
        for i in GR: a(f'v_mul_f32 v{T+i}, v{AA0+i}, v{ACC+4*i+2}')
        for i in GR: a(f'v_fmac_f32 v{T+i}, v{AA1+i}, v{ACC+4*i+3}')
        rndl(T + i for i in GR)
        U = T + 4
        for k in range(4):
            for i in GR: a(f'{"v_mul_f32_dpp" if k == 0 else "v_fmac_f32_dpp"} v{U+i}, v{T+i}, v{r1+k} {qp(k)}')
        rndl(U + i for i in GR)
        for i in GR: a(f'v_mul_f32 v{U+i}, v{U+i}, v{GG+i}')
        rndl(U + i for i in GR)
        for i in GR: a(f'v_add_f32 v{U+i}, v{U+i}, v{MO+i}')
        a(f'v_cvt_pk_bf16_f32 v{U}, v{U}, v{U+1}')
        a.vmem(f'buffer_store_short v{U}, v{VCN}, s[12:15], s2 offen', 'st')
        a.vmem(f'buffer_store_short_d16_hi v{U}, v{VCN}, s[12:15], s2 offen offset:2048', 'st')
        if ng == 3:
            a(f'v_cvt_pk_bf16_f32 v{U+2}, v{U+2}, v{U+2}')
            a('v_cmpx_gt_u32 vcc, 452, v0')
            a.vmem(f'buffer_store_short v{U+2}, v{VCN}, s[12:15], s18 offen', 'st')
    def LM():
        a('s_mov_b64 exec, -1')
        a(f'v_and_b32 v{MO}, 3, v0')
        a(f'v_lshrrev_b32 v{MO+1}, 2, v0')
        a(f'v_lshl_add_u32 v{MO}, v{MO}, 8, v{MO+1}')
        a(f'v_min_u32 v{MO}, 624, v{MO}')
        a(f'v_lshlrev_b32 v{MO}, 3, v{MO}')
        if not cfg.nold & 2: a.vmem(f'buffer_load_dwordx2 v[{MO}:{MO+1}], v{MO}, s[8:11], s2 offen', 'mo')
    def LD(cls=''):
        a('s_mov_b64 exec, -1')
        a(f'v_and_b32 v{T}, 3, v0')
        a(f'v_lshrrev_b32 v{T+1}, 2, v0')
        a(f'v_lshl_add_u32 v{T}, v{T}, 8, v{T+1}')
        a(f'v_min_u32 v{T}, 624, v{T}')
        a('s_lshr_b32 s0, s2, 2')
        a(f'v_lshl_add_u32 v{T+1}, v{T}, 1, s0')
        if not cfg.nold & 1: a.vmem(f'global_load_ushort v{DI}, v{T+1}, s[68:69]', 'dist')
        if not cfg.lm: LM()
        if not cfg.nold & 4 and not cfg.mx:
            a('s_cmp_lg_u32 s3, 15')
            a('s_cbranch_scc1 k2_now' + cls)
            a(f'v_and_b32 v{T}, 63, v0')
            a(f'v_lshlrev_b32 v{T}, 3, v{T}')
            a('s_mov_b32 exec_hi, 0')
            for msk, p, o in ((0xff, 60, 0), (0xffff00, 62, -64), (0xf000000, 64, -192), (0xf0000000, 66, -224)):
                a(f's_mov_b32 exec_lo, {hex(msk)}')
                a(f'global_load_dwordx2 v[{WTS}:{WTS+1}], v{T}, s[{p}:{p+1}] offset:{o}')
            a(f'k2_now{cls}:')
    def ZM(lo, hi):
        a('s_mov_b64 exec, -1')
        a(f'v_lshlrev_b32 v{T}, 4, v0')
        a(f'v_add_u32 v{T}, {lo}, v{T}')
        for k in range(4): a(f'v_mov_b32 v{T+4+k}, 0')
        n = (hi - lo) // 16
        for k in range((n + 1023) // 1024):
            if n - 1024*k < 1024: a(f'v_cmpx_gt_u32 vcc, {n - 1024*k}, v0')
            a.lds(f'ds_write_b128 v{T}, v[{T+4}:{T+7}] offset:{16384*k}')

    OUT, IN, ANG, BIN, RK, BS, VS1, WTS, CTR = 4, 14, 24, 30, 40, 50, 122, 76, 78
    S_ = 60; FLG = 84 if cfg.pl else R(4)
    KC, KB = BK, BK + 4 * 1028
    RB_, RD_, X_ = ZB, ZB + 10240, 16384
    assert KB % 16 == 0 and RD_ + 40000 <= FB and RB_ - X_ <= 65535 and 0 <= RD_ - 4 * X_ <= 65535
    def ex1000():
        a('s_mov_b64 exec, s[76:77]')
    def head():
        a('s_cmp_ge_u32 s2, 256')
        a('s_cbranch_scc1 k2_end')
        a('s_load_dwordx2 s[16:17], s[0:1], 16')
        a('s_load_dwordx2 s[4:5], s[0:1], 104')
        a('s_load_dwordx2 s[20:21], s[0:1], 8')
        a('s_load_dwordx2 s[24:25], s[0:1], 32')
        a('s_load_dwordx2 s[8:9], s[0:1], 0')
        a('s_load_dwordx2 s[12:13], s[0:1], 88')
        a('s_load_dwordx8 s[60:67], s[0:1], 56')
        a('s_load_dwordx2 s[68:69], s[0:1], 24')
        a('s_load_dwordx2 s[70:71], s[0:1], 96')
        if cfg.diag:
            a(f'v_mov_b32 v{VS}, 0')
            a(f'v_mov_b32 v{VS1}, 0')
        stamp(a, cfg, 0, VS1)
        srd(a, 16, 10240000); srd(a, 20, 10240000); srd(a, 24, 5120000)
        srd(a, 4, WSZ); srd(a, 8, 1280000); srd(a, 12, 1280004)
        a('v_lshrrev_b32 v3, 6, v0')
        a('v_lshlrev_b32 v1, 3, v0')
        a('v_lshlrev_b32 v2, 2, v0')
        a('v_readfirstlane_b32 s3, v3')
        a('s_mov_b32 s78, s2')
        a('s_mul_i32 s40, s2, 40000')
        for c in range(1, 5): a(f's_add_u32 s{40+c}, s40, {8000*c}')
        for c in range(5): a(f's_lshr_b32 s{45+c}, s{40+c}, 1')
        a('s_and_b32 s79, s2, 7')
        a('s_lshl_b32 s79, s79, 5')
        a('s_lshr_b32 s80, s2, 3')
        a('s_add_u32 s79, s79, s80')
        a('s_mul_i32 s2, s79, 5000')
        a(f's_and_b32 s82, s79, {(1 << cfg.tg) - 1}')
        a(f's_lshr_b32 s79, s79, {cfg.tg}')
        a(f's_lshl_b32 s79, s79, {8 + cfg.tg}')
        a('s_add_u32 s79, s79, s82')
        a('s_lshl_b32 s79, s79, 2')
        a(f's_add_u32 s79, s79, {OFFB}')
        a(f's_mul_i32 s80, s80, {cfg.rot}')
        a('v_cmp_gt_u32 s[76:77], s3, v0' if False else 'v_cmp_gt_u32 vcc, 1000, v0')
        a('s_mov_b64 s[76:77], vcc')
        a(f'v_mov_b32 v{ZR}, 0')
        a.wait_lg0()
        a(f's_mov_b32 s81, {cfg.spin}')
        a('s_cmp_ge_u32 s78, 16')
        a('s_cbranch_scc1 k1_noclr')
        a('s_lshl_b32 s0, s78, 14')
        a(f's_add_u32 s0, s0, {OFFB}')
        for k in range(4): a(f'v_mov_b32 v{T+4+k}, 0')
        a(f'v_lshlrev_b32 v{T}, 4, v0')
        a(f'buffer_store_dwordx4 v[{T+4}:{T+7}], v{T}, s[4:7], s0 offen sc1')
        a('k1_noclr:')
        ex1000()
    def INJ():
        a('s_mov_b64 exec, -1')
        a(f'v_and_b32 v{T+2}, 63, v0')
        a(f'v_mul_u32_u24 v{T+2}, 1028, v{T+2}')
        a(f'v_subrev_u32 v{T}, s80, v0')
        a(f'v_and_b32 v{T}, 255, v{T}')
        a(f'v_lshlrev_b32 v{T}, 2, v{T}')
        a('v_cmpx_gt_u32 vcc, 640, v0')
        for r in range(NR): a.lds(f'ds_write_b32 v2, v2 offset:{CNT[r]}')
        a('v_cmpx_gt_u32 vcc, 256, v0')
        a.lds(f'ds_write_b32 v2, v{T} offset:{BC}')
        a('v_cmpx_gt_u32 vcc, 64, v0')
        a.lds(f'ds_write_b32 v{T+2}, v{ZR} offset:{BK+1024}')
        ZM(FB, LDS)
        ex1000()
    def INI():
        a('s_cmp_ge_u32 s3, 4')
        a('s_cbranch_scc1 k1_nokc')
        a(f'ds_write_b32 v2, v{ZR} offset:{KC}')
        a('s_waitcnt lgkmcnt(0)')
        a('k1_nokc:')
        a('v_mov_b32 v3, 1')
        a(f'v_mov_b32 v73, {f2h(SCALE)}')
        a('s_mov_b32 s72, 6871948')
        a('s_mov_b32 s73, -625')
        a('s_mov_b32 s74, 0xfffff')
        a(f's_mul_i32 s50, s78, {STRIDE}')
        a('s_lshr_b32 s51, s50, 2')
        a(f's_add_u32 s51, s51, {DOFF + BBASE}')
        a(f's_add_u32 s50, s50, {DOFF - 10240}')
        a('s_cmp_lt_u32 s3, 10')
        a('s_cselect_b32 s54, s51, s50')
        for i in range(1, 4): a(f's_add_u32 s{50+i}, s50, {16384*i}')
    def SIG():
        assert not a.lg
        a('s_cmp_lt_u32 s78, 16')
        a('s_cbranch_scc1 k1_sig')
        a('s_barrier')
        a('k1_sigr:')
        n = len(a.vm)
        with a.ool():
            a('k1_sig:')
            a(f's_waitcnt vmcnt({n})')
            a('s_barrier')
            a('s_cmp_lg_u32 s3, 0')
            a('s_cbranch_scc1 k1_sigr')
            a('s_lshl_b32 s0, s78, 2')
            a(f'v_mov_b32 v{S_+4}, s0')
            a('s_mov_b64 exec, 1')
            a(f'global_store_dword v{S_+4}, v3, s[70:71] sc1')
            a('s_mov_b64 exec, -1')
            a('s_branch k1_sigr')
    def PF():
        a('s_getpc_b64 s[84:85]')
        a('k1_pf:')
        a(f's_sub_u32 s84, s84, k1_pf-{NAME}_kernel')
        a('s_subb_u32 s85, s85, 0')
        a('s_lshr_b32 s87, s78, 3')
        a('s_lshl_b32 s87, s87, 4')
        a('s_add_u32 s87, s87, s3')
        a('s_and_b32 s87, s87, 255')
        a('s_lshl_b32 s87, s87, 7')
        a(f's_min_u32 s87, s87, k_last-{NAME}_kernel')
        a('s_load_dword s86, s[84:85], s87')
    def PT():
        a(f's_cmp_lg_u32 s3, {cfg.ptw}')
        a('s_cbranch_scc1 k1_nopt')
        a('s_lshr_b32 s0, s2, 2')
        a('s_and_b32 s0, s0, -4')
        a(f's_mul_i32 s1, s78, {STRIDE}')
        a(f's_add_u32 s1, s1, {DOFF + 40192}')
        a(f's_mul_i32 s83, s78, {STRIDE // 4}')
        a(f's_add_u32 s83, s83, {DOFF + BBASE}')
        l = [('8:9', 's2'), ('68:69', 's0'), ('12:13', 's2'), ('60:61', 0), ('62:63', 0), ('64:65', 0), ('66:67', 0), ('70:71', 128), ('4:5', 's1'), ('4:5', 's83'), ('20:21', 's40'), ('24:25', 's45')]
        for i, (b, o) in reversed(list(enumerate(l))):
            if cfg.pt >> i & 1: a(f's_load_dword s{88+i}, s[{b}], {o}')
        a('k1_nopt:')
    def MX():
        a('s_mov_b64 s[84:85], s[70:71]')
        a('s_cmp_eq_u32 s3, 0')
        a('s_cselect_b32 s86, 8, 0')
        for w, p, n in ((12, 60, 8), (13, 62, 16), (14, 64, 4), (15, 66, 4)):
            a(f's_cmp_eq_u32 s3, {w}')
            a(f's_cselect_b64 s[84:85], s[{p}:{p+1}], s[84:85]')
            a(f's_cselect_b32 s86, {n}, s86')
        a(f'v_and_b32 v{CTR}, 63, v0')
        a(f'v_lshlrev_b32 v{CTR}, 3, v{CTR}')
        a('s_bfm_b64 exec, s86, 0')
        a.vmem(f'global_load_dwordx2 v[{WTS}:{WTS+1}], v{CTR}, s[84:85] sc1', 'mx')
        ex1000()
    def FA():
        a('s_cmp_lg_u32 s3, 0')
        a('s_cbranch_scc1 k1_nofa')
        a('s_mov_b64 exec, 0xffff')
        a(f'v_lshlrev_b32 v{CTR}, 2, v0')
        a(f'global_load_dword v{CTR}, v{CTR}, s[70:71] sc1' if not cfg.nold & 8 else f'v_mov_b32 v{CTR}, 1')
        if 'CO' in pre_seen: a('s_mov_b64 exec, -1')
        else: ex1000()
        a('k1_nofa:')
    def ld_out(c): a.vmem(f'buffer_load_dwordx2 v[{OUT+2*c}:{OUT+2*c+1}], v1, s[16:19], s{40+c} offen{cfg.ldnt}', f'o{c}')
    def ld_in(c): a.vmem(f'buffer_load_dwordx2 v[{IN+2*c}:{IN+2*c+1}], v1, s[20:23], s{40+c} offen{cfg.ldnt}', f'i{c}')
    def ld_ang(c): a.vmem(f'buffer_load_dword v{ANG+c}, v2, s[24:27], s{45+c} offen{cfg.ldnt}', f'a{c}')
    def rank(c):
        a.wait(vm=[f'o{c}'])
        for i in (2*c, 2*c+1):
            a(f'v_mul_hi_u32_u24 v{BIN+i}, s72, v{OUT+i}')
            a(f'v_mad_i32_i24 v{OUT+i}, v{BIN+i}, s73, v{OUT+i}')
            a(f'v_lshlrev_b32 v{BIN+i}, 2, v{BIN+i}')
            a.lds(f'ds_add_rtn_u32 v{RK+i}, v{BIN+i}, v3 offset:{KC}', f'r{i}')
    def scan():
        a.wait_lg0()
        stamp(a, cfg, 1, VS1)
        a('s_barrier')
        a('s_cmp_lg_u32 s3, 0')
        a(f's_cbranch_scc1 k1_noscan')
        T = S_
        a(f'v_lshlrev_b32 v{T+12}, 4, v0')
        a(f'ds_read_b128 v[{T}:{T+3}], v{T+12} offset:{KC}')
        a('s_waitcnt lgkmcnt(0)')
        a(f'v_add_u32 v{T+5}, v{T}, v{T+1}')
        a(f'v_add_u32 v{T+6}, v{T+5}, v{T+2}')
        a(f'v_add_u32 v{T+7}, v{T+6}, v{T+3}')
        a(f'v_mov_b32 v{T+4}, v{T+7}')
        a(f'v_subrev_u32 v{T+7}, {X_}, v{T+7}')
        for d in ('row_shr:1 row_mask:0xf', 'row_shr:2 row_mask:0xf', 'row_shr:4 row_mask:0xf', 'row_shr:8 row_mask:0xf',
                  'row_bcast:15 row_mask:0xa', 'row_bcast:31 row_mask:0xc'):
            a(f'v_add_u32_dpp v{T+4}, v{T+4}, v{T+4} {d} bank_mask:0xf')
        a(f'v_sub_u32 v{T+4}, v{T+4}, v{T+7}')
        a(f'v_add_u32 v{T+7}, v{T+4}, v{T+6}')
        a(f'v_add_u32 v{T+6}, v{T+4}, v{T+5}')
        a(f'v_add_u32 v{T+5}, v{T+4}, v{T}')
        a(f'ds_write_b128 v{T+12}, v[{T+4}:{T+7}] offset:{KB}')
        for i in range(4): a(f'v_lshl_or_b32 v{T+i}, v{T+i}, 16, v{T+4+i}')
        a('s_waitcnt lgkmcnt(0)')
        a('s_barrier')
        if 'SIG' not in pre_seen:
            a('s_cmp_ge_u32 s78, 16')
            a('s_cbranch_scc1 k1_scanned')
            a('s_lshl_b32 s0, s78, 2')
            a(f'v_mov_b32 v{T+4}, s0')
            a('s_mov_b64 exec, 1')
            a(f'global_store_dword v{T+4}, v3, s[70:71] sc1')
            a('s_mov_b64 exec, -1')
        a('s_branch k1_scanned')
        a(f'k1_noscan:')
        a('s_barrier')
        a('k1_scanned:')
        for i in range(10): a.lds(f'ds_read_b32 v{BS+i}, v{BIN+i} offset:{KB}', f'b{i}')
        stamp(a, cfg, 2, VS1)
    def enc(c):
        T = 74
        a.wait(vm=[f'i{c}'])
        for h in range(2):
            i = 2*c + h
            a(f'v_mul_hi_u32_u24 v{T+h}, s72, v{IN+i}')
            a(f'v_mad_i32_i24 v{IN+i}, v{T+h}, s73, v{IN+i}')
            a(f'v_lshl_or_b32 v{OUT+i}, v{IN+i}, 10, v{OUT+i}')
            a(f'v_mov_b32 v{IN+i}, v{T+h}')
        a.wait(vm=[f'a{c}'])
        a(f'v_lshlrev_b32 v{T}, 16, v{ANG+c}')
        a(f'v_and_b32 v{T+1}, 0xffff0000, v{ANG+c}')
        for h in range(2): a(f'v_mul_f32 v{T+h}, 0.15915494, v{T+h}')
        for h in range(2): a(f'v_fract_f32 v{T+h}, v{T+h}')
        for h in range(2): a(f'v_cos_f32 v{T+h}, v{T+h}')
        for h in range(2): a(f'v_fmaak_f32 v{T+h}, v73, v{T+h}, 0x49000000')
        for h in range(2): a(f'v_cvt_i32_f32 v{T+h}, v{T+h}')
        for h in range(2): a(f'v_sub_u32 v{T+h}, v{T+h}, v{OUT+2*c+h}')
        for h in range(2): a(f'v_bfi_b32 v{OUT+2*c+h}, s74, v{OUT+2*c+h}, v{T+h}')
    def wr(c):
        for i in (2*c, 2*c+1):
            a.wait(lg=[f'b{i}'])
            a(f'v_add_u32 v{RK+i}, v{RK+i}, v{BS+i}')
            a(f'v_lshlrev_b32 v{BS+i}, 2, v{RK+i}')
            a.lds(f'ds_write_b8 v{RK+i}, v{IN+i} offset:{RB_ - X_}')
            a.lds(f'ds_write_b32 v{BS+i}, v{OUT+i} offset:{RD_ - 4*X_}')
    def copyout():
        a.wait_lg0()
        stamp(a, cfg, 3, VS1)
        a('s_mov_b64 exec, -1')
        a('v_lshlrev_b32 v1, 4, v0')
        a(f'v_add_u32 v2, {RB_}, v1')
        a('v_subrev_u32 v3, 632, v0')
        a('s_barrier')
        for i in range(4): a.lds(f'ds_read_b128 v[{4+4*i}:{7+4*i}], v2 offset:{16384*i}', f'c{i}')
        for i in range(4):
            if i == 0: a('v_cmpx_le_u32 vcc, 8, v3')
            if i == 1: a('s_mov_b64 exec, -1')
            if i == 3:
                a(f'v_cmpx_gt_u32 vcc, {3140-3072}, v0')
                a(f's_cbranch_execz k1_skip')
            a.wait(lg=[f'c{i}'])
            a.vmem(f'buffer_store_dwordx4 v[{4+4*i}:{7+4*i}], v1, s[4:7], s{50+i if i else 54} offen{cfg.stf}', f's{i}')
        a(f'k1_skip:')
        a('s_mov_b64 exec, -1')
        a.wait_lg0()
    def seam():
        stamp(a, cfg, 4, VS1)
        a('v_lshrrev_b32 v4, 6, v0')
        a('v_and_b32 v5, 63, v0')
        a('v_lshlrev_b32 v1, 2, v5')
        a(f'v_add_u32 v2, {BBASE + DOFF*3//4}, v5')
        a('v_mov_b32 v3, 1028')
        a('v_lshl_add_u32 v6, v4, 4, v5')
        a(f'v_mul_u32_u24 v6, {STRIDE}, v6')
        a(f'v_add_u32 v6, {DOFF - 4*X_}, v6')
        a('v_lshl_add_u32 v7, v5, 4, v4')
        a('v_add_u32 v7, s80, v7')
        a('v_and_b32 v7, 255, v7')
        a('v_mul_u32_u24 v5, 1028, v5')
        a('v_lshl_add_u32 v4, v4, 2, v5')
        a(f's_lshl_b32 s0, s3, {6 + cfg.tg}')
        a('s_add_u32 s79, s79, s0')
        a(f'v_lshlrev_b32 v{FLG}, {cfg.tg}, v1')
        if cfg.tg == 2: a(f'v_lshlrev_b32 v{S_+4}, 10, v1')
        else:
            a(f'v_lshrrev_b32 v{S_+4}, {cfg.tg}, v1')
            a(f'v_and_b32 v{S_+5}, {(1 << cfg.tg) - 1}, v1')
            a(f'v_lshl_add_u32 v{S_+4}, v{S_+4}, {8 + cfg.tg}, v{S_+5}')
            a(f'v_lshlrev_b32 v{S_+4}, 2, v{S_+4}')
        a(f's_lshl_b32 s0, s78, {2 + cfg.tg}')
        a(f's_add_u32 s0, s0, {OFFB}')
        if late_ld:
            a('s_cmp_eq_u32 s3, 15')
            a('s_cbranch_scc1 k1_w15')
            a('s_waitcnt vmcnt(2)')
            a('k1_w15:')
            a('s_waitcnt vmcnt(6)')
        else: a.wait_vm0()
        if cfg.wseam:
            assert not late_ld and 'LD' in pre_seen
            WST(); a('s_mov_b64 exec, -1'); a.wait_lg0()
        stamp(a, cfg, 5, VS1, True)
        a('s_cmp_lg_u32 s3, 0')
        a('s_cbranch_scc1 k1_nofl')
        a(f's_mov_b64 exec, {0xff if cfg.mx else 0xffff}')
        a('k1_cchk:')
        if cfg.mx: a(f'v_and_b32 v{WTS}, v{WTS}, v{WTS+1}')
        a(f'v_cmp_ne_u32 vcc, 1, v{WTS if cfg.mx else CTR}')
        a('s_cbranch_vccnz k1_cwait')
        a('s_mov_b64 exec, -1')
        a('s_barrier')
        a(f'buffer_store_dwordx4 v[{S_}:{S_+3}], v{S_+4}, s[4:7], s0 offen sc1')
        a('s_branch k1_fl')
        a('k1_nofl:')
        a('s_barrier')
        a('k1_fl:')
        stamp(a, cfg, 0, VS)
        with a.ool():
            a('k1_cwait:')
            a('s_sub_u32 s81, s81, 1')
            a('s_cbranch_scc1 k2_end')
            a('s_sleep 4')
            a(f'global_load_dwordx2 v[{WTS}:{WTS+1}], v{CTR}, s[70:71] sc1' if cfg.mx else f'global_load_dword v{CTR}, v1, s[70:71] sc1')
            a('s_waitcnt vmcnt(0)')
            a('s_branch k1_cchk')
    def SCOUT(cls):
        a(f's_cmp_lg_u32 s3, {cfg.sw}')
        a(f's_cbranch_scc1 k2_scr{cls}')
        a('s_mov_b64 exec, 0xffff')
        a(f'k2_sc{cls}:')
        a(f'buffer_load_dword v{VCN}, v{FLG}, s[4:7], s79 offen sc1')
        a('s_waitcnt vmcnt(0)')
        a(f'v_cmp_eq_u32 vcc, 0, v{VCN}')
        a('s_mov_b64 exec, vcc')
        a('s_bcnt1_i32_b32 s0, vcc_lo')
        a(f's_cmp_le_u32 s0, {16 - cfg.sk}')
        a(f's_cbranch_scc1 k2_scr{cls}')
        a('s_sub_u32 s81, s81, 1')
        a('s_cbranch_scc1 k2_end')
        if cfg.sslp: a(f's_sleep {cfg.sslp}')
        a(f's_branch k2_sc{cls}')
        a(f'k2_scr{cls}:')
        a('s_barrier')
    def POLL():
        a('s_mov_b64 exec, 0xffff')
        a.vmem(f'buffer_load_dword v{VCN}, v{FLG}, s[4:7], s79 offen sc1', 'off')
    head()
    pre_seen = set(); late_ld = False
    for k, c in expand(cfg.sa):
        if k == 'O': ld_out(c)
        elif k == 'I': ld_in(c)
        elif k == 'A': ld_ang(c)
        elif k == 'INI': INI()
        elif k == 'BAR': bar()
        elif k == 'FA': FA()
        elif k == 'MX': assert cfg.mx; MX(); pre_seen.add('FA')
        elif k == 'LM': assert cfg.lm; LM(); ex1000()
        elif k == 'PT': PT()
        elif k == 'PF': PF()
        elif k == 'SIG': assert 'INI' in pre_seen; SIG()
        elif k == 'INJ': INJ()
        elif k == 'SB': a('s_barrier')
        elif k == 'LD':
            LD()
            if 'CO' in pre_seen: late_ld = not cfg.wseam; assert 'FA' in pre_seen; a('s_mov_b64 exec, -1')
            else: ex1000()
        elif k == 'WST': WST(); ex1000()
        elif k == 'R': rank(c)
        elif k == 'SCAN': scan()
        elif k == 'E': enc(c)
        elif k == 'W': wr(c)
        elif k == 'CO': copyout()
        else: raise Exception(k)
        pre_seen.add(k)
    assert {'INI', 'INJ', 'FA'} <= pre_seen
    seam()
    if cfg.poll0 and not cfg.pl: POLL()
    if cfg.pl:
        for k, c in expand(cfg.sp):
            if k == 'PL': PL()
            elif k == 'LEFT': LEFT('P')
            elif k == 'SCOUT': SCOUT('P')
            elif k == 'ZM': ZM(ZB, FB); cfg.zm0 = 1
            elif k == 'LD': LD()
            elif k == 'WST': WST()
            elif k == 'BAR': bar()
            elif k == 'ST': stamp(a, cfg, c, VS)
            else: raise Exception(k)
    a('s_cmp_ge_u32 s3, 8')
    a('s_cbranch_scc1 k2_N')
    save = (list(a.vm), list(a.lg))

    def body(cls):
        isR = cls == 'R'; NG = 3 if isR else 2
        cur[0] = rmap if isR else rmapn
        ops = expand((cfg.srt if isR else cfg.snt or cfg.srt) + ' ' + (cfg.sr if isR else cfg.sn or cfg.sr))
        order = [j for k, j in ops if k == 'L']
        assert cfg.pl or sorted(order) == list(range(16))
        gorder = [j for k, j in ops if k == 'G']
        for kk in ('G', 'W') + (() if cfg.pl else ('SA', 'SW')): assert sorted(j for k, j in ops if k == kk) == list(range(16)), kk
        done = set(); nl = 0; ng = 0; seen = {'LEFT'} if cfg.pl else set(); fr = None; left = False
        nro = [j for k, j in ops if k == 'RO']
        assert nro == list(range(NR))
        for k, j in ops:
            if k == 'L':
                if nl == 0: decode(cls, order)
                L(j); nl += 1
            elif k == 'LEFT': assert nl == 16; LEFT(cls)
            elif k == 'G': G(j); ng += 1
            elif k == 'SA': SA(j)
            elif k == 'SW': SW(j, cls)
            elif k == 'DEC': assert 'LEFT' in seen; DEC(gorder)
            elif k == 'W': assert 'ZM' in seen or cfg.zm0; W(j, cls); done.add(j)
            elif k == 'ZM': ZM(ZB, FB)
            elif k == 'PRE': PRE(NG)
            elif k == 'SCOUT': SCOUT(cls)
            elif k == 'LD': LD(cls)
            elif k == 'LM': assert cfg.lm; LM()
            elif k == 'PM': assert cfg.lm and 'LM' in seen | pre_seen; PM()
            elif k == 'WST': WST(cls)
            elif k == 'BAR': bar()
            elif k == 'SB': a('s_barrier')
            elif k == 'ST': stamp(a, cfg, j, VS)
            elif k == 'PRIO': a(f's_setprio {j}')
            elif k == 'RO':
                assert 'PRE' in seen and (j < NR - 1 or fr)
                assert all(x in done for x in range(16) if rnd(x) <= j)
                RO(j, NG, [R(x) for x in sorted(done) if R(x) not in (fr or ())] + [T + 8, T + 12], j == 0, j == NR - 1)
            elif k == 'FINA':
                assert 'LEFT' in seen
                fr = [R(x) for x in sorted(done)][:2]; FINA(*fr)
            elif k == 'FIN': assert 'PM' in seen or not cfg.lm; FIN(NG, *fr)
            else: raise Exception(k)
            seen.add(k)
        if cfg.diag:
            a.wait_vm0()
            stamp(a, cfg, 9, VS, True)
            stamp_out(a, cfg, 0, VS1, 1, 4, 78)
            stamp_out(a, cfg, 1, VS, 1, 4, 78)
        a('s_endpgm')
    body('R')
    a('k2_N:')
    a.vm, a.lg = save
    body('N')
    a('k2_end:')
    a('s_endpgm')
    return a.text(), 124 if cfg.diag else 120, LDS

def desc(name, vg):
    return f'''.amdhsa_kernel {name}
  .amdhsa_next_free_vgpr {vg}
  .amdhsa_next_free_sgpr 102
  .amdhsa_accum_offset {(vg+3)//4*4}
  .amdhsa_group_segment_fixed_size 0
  .amdhsa_kernarg_size 112
  .amdhsa_user_sgpr_count 2
  .amdhsa_user_sgpr_kernarg_segment_ptr 1
  .amdhsa_system_sgpr_workgroup_id_x 1
.end_amdhsa_kernel
'''

def build(cfg):
    t2, v2, l2 = k2(cfg)
    n = NAME + '_kernel'
    s = HDR + f'; @launch grid=(256,1,1) block=(1024,1,1) lds={l2}\n'
    s += '.amdgcn_target "amdgcn-amd-amdhsa--gfx950"\n.text\n'
    s += f'.globl {n}\n.p2align 8\n.type {n},@function\n{n}:\n{t2}k_last:\n    s_endpgm\n'
    s += '.section .rodata,"a"\n.p2align 6\n' + desc(n, v2)
    return s

if __name__ == '__main__':
    ap = argparse.ArgumentParser()
    ap.add_argument('-o', default='cdna_kernels/' + NAME + '.s')
    ap.add_argument('kv', nargs='*')
    x = ap.parse_args()
    cfg = Cfg(); cfg.probe = 0; cfg.probek = 0; cfg.probes = 0; cfg.epre = 0; cfg.epost = 0; cfg.rep = 1; cfg.rep2 = 1
    cfg.caps = '16/16'; cfg.rmap = 'r0000000011111111'; cfg.rod = 5; cfg.lf = ''; cfg.gl = 0
    cfg.exp = 0; cfg.k1pad = 0; cfg.rot = 0; cfg.rbn = 8
    cfg.sa = 'O0-4 INI BAR I,A0-4 INJ R0-4 SCAN LD E,W0-4 WST FA CO'; cfg.poll0 = 1; cfg.pbar = 0; cfg.nrep = 8; cfg.frs = 1024; cfg.slp0 = 4; cfg.spin = 400000; cfg.slp = 0; cfg.lf = ' sc1'
    cfg.zm0 = 0; cfg.rmapn = 0; cfg.snt = ''; cfg.sn = ''; cfg.rod = 7
    cfg.gf = ''; cfg.ld0 = 0
    cfg.ld0 = 1; cfg.rot = 1
    cfg.srt = 'PRE L0-15 LEFT ST2 SA0-1 SA2-15,SW0-13 SW14-15 BAR ST3 DEC'
    cfg.sr = 'G0-2 ZM BAR G3 W0-3,G4-7 SB G8 W4-7 BAR ST5 RO0 G9-10 BAR ST6 G11-12 W8-10,G13-15 FINA W11-15 BAR ST7 RO1 ST8 FIN'
    cfg.sn = 'G0-2 ZM BAR G3 W0-3,G4-7 SB G8 W4-7 BAR ST5 G9-10 RO0 BAR ST6 G11-12 W8-10,G13-15 FINA W11-15 BAR ST7 RO1 ST8 FIN'
    cfg.pl = int('pl=1' in x.kv); cfg.wseam = 0; cfg.mx = 0; cfg.pt = 0xfff; cfg.ptw = 4; cfg.lm = 0; cfg.tg = 2; cfg.sw = 15; cfg.sk = 14; cfg.sslp = 4; cfg.nold = 0; cfg.poll0 = 0; cfg.slp = 12
    cfg.sa = 'O0-4 INI SIG I,A0-4 INJ R0-4 SCAN FA LD E,W0-4 WST CO'
    cfg.wseam = 1; cfg.slp = 4; cfg.tg = 5; cfg.lm = 1
    cfg.sa = 'O0-4 INI SIG I,A0-4 INJ R0-4 SCAN LM LD MX E,W0-4 CO'; cfg.mx = 1
    cfg.srt = 'PRE PM ZM L0-15 LEFT ST2 SA0-1 SA2-15,SW0-13 SW14-15 BAR ST3 DEC'
    cfg.sr = cfg.sr.replace('ZM ', ''); cfg.sn = cfg.sn.replace('ZM ', '')
    if cfg.pl:
        cfg.sa = 'O0-4 INI BAR I,A0-4 INJ R0-4 SCAN E,W0-4 CO FA LD'
        cfg.sp = 'PL LEFT WST BAR ST3'; cfg.srt = 'DEC'; cfg.slp = 8; cfg.th = 6
        cfg.sr = cfg.sr.replace('G3 W0-3', 'G3 PRE W0-3'); cfg.sn = cfg.sn.replace('G3 W0-3', 'G3 PRE W0-3')
    for kv in x.kv:
        k, v = kv.split('=', 1)
        try: v = int(v, 0)
        except ValueError: v = v.replace('_', ' ')
        setattr(cfg, k, v)
    open(x.o, 'w').write(build(cfg))
```
